```python
import torch

def _softmax(x, axis=-1):
    return torch.softmax(x, dim=axis)
def _gelu(x):
    return torch.nn.functional.gelu(x, approximate="tanh")
def _silu(x):
    return torch.nn.functional.silu(x)
def _sigmoid(x):
    return torch.sigmoid(x)
def _layernorm(x, axis=-1, eps=1e-5):
    m = x.mean(dim=axis, keepdim=True)
    v = x.var(dim=axis, keepdim=True, unbiased=False)
    return (x - m) / torch.sqrt(v + eps)
def _scatter_add(tgt, idx, src, axis=0):
    return tgt.clone().index_add_(axis, idx, src)
def _segment_sum(src, seg, n):
    out = torch.zeros((n,) + src.shape[1:], dtype=src.dtype)
    return out.index_add_(0, seg, src)
def _pad(x, pw):
    flat = tuple(v for pair in reversed(pw) for v in pair)
    return torch.nn.functional.pad(x, flat)

kernel_name = 'concat_heads__ssm_conv_h3__compressed_kv_cla__prompt'

def setup_inputs():

    _w = (lambda a: (lambda t: t.to(torch.bfloat16) if t.is_floating_point() else t)(torch.as_tensor(a)))
    def _A_setup():
        B, S, D = 1, 2048, 448
        ks = 4
        return {
            "q": _w((lambda *s: torch.randn(*s, dtype=torch.bfloat16) * 0.05)(B, S, D)),
            "k": _w((lambda *s: torch.randn(*s, dtype=torch.bfloat16) * 0.1)(B, S, D)),
            "v": _w((lambda *s: torch.randn(*s, dtype=torch.bfloat16) * 0.1)(B, S, D)),
            "shift_k": _w((lambda *s: torch.randn(*s, dtype=torch.bfloat16) * 0.1)(D, ks) * 0.5),
            "ssm_k": _w((lambda *s: torch.randn(*s, dtype=torch.bfloat16) * 0.1)(D, S) * (1.0 / S ** 0.5)),
            "ssm_D": _w((lambda *s: torch.randn(*s, dtype=torch.bfloat16) * 0.1)(D)),
        }
    _A_in = _A_setup()

    def _B_setup():
        B, H, Sq, Sk, D, M = 1, 16, 2048, 2048, 256, 448
        Dc = 4 * D
        return {
            "x": _w((lambda *s: torch.randn(*s, dtype=torch.bfloat16) * 3.2)(B, Sq, M)),
            "c_kv": _w((lambda *s: torch.randn(*s, dtype=torch.bfloat16) * 0.05)(B, Sk, Dc)),
            "w_q": _w((lambda *s: torch.randn(*s, dtype=torch.bfloat16) * 3.2)(M, H, D) * (M ** -0.5)),
            "w_uk": _w((lambda *s: torch.randn(*s, dtype=torch.bfloat16) * 3.2)(Dc, H, D) * (Dc ** -0.5)),
            "w_uv": _w((lambda *s: torch.randn(*s, dtype=torch.bfloat16) * 0.05)(Dc, H, D) * (Dc ** -0.5)),
            "w_o": _w((lambda *s: torch.randn(*s, dtype=torch.bfloat16) * 0.05)(H, D, M) * ((H * D) ** -0.5)),
        }
    _B_in = _B_setup()

    return {
        "A_q": _A_in["q"],
        "A_k": _A_in["k"],
        "A_v": _A_in["v"],
        "A_shift_k": _A_in["shift_k"],
        "A_ssm_k": _A_in["ssm_k"],
        "A_ssm_D": _A_in["ssm_D"],
        "B_x": _B_in["x"],
        "B_c_kv": _B_in["c_kv"],
        "B_w_q": _B_in["w_q"],
        "B_w_uk": _B_in["w_uk"],
        "B_w_uv": _B_in["w_uv"],
        "B_w_o": _B_in["w_o"],
    }

def reference(A_q, A_k, A_v, A_shift_k, A_ssm_k, A_ssm_D, B_x, B_c_kv, B_w_q, B_w_uk, B_w_uv, B_w_o):
    def _A_ref(q, k, v, shift_k, ssm_k, ssm_D):
        B, S, D = q.shape
        ks = shift_k.shape[-1]
        k_pad = _pad(k, ((0, 0), (ks - 1, 0), (0, 0)))
        k_shift = torch.zeros_like(k)
        for t in range(ks):
            k_shift = k_shift + k_pad[:, t:t + S, :] * shift_k[:, ks - 1 - t][None, None, :]
        kv = k_shift * v
        L = 2 * S
        kv_pad = _pad(kv, ((0, 0), (0, S), (0, 0)))
        kf_pad = _pad(ssm_k, ((0, 0), (0, S)))
        kv_f = (lambda x, axes=(-2,-1): torch.fft.rfft2(x.float(), dim=axes))(kv_pad[:, None, :, :], axes=(1, 2))
        kf_f = (lambda x, axes=(-2,-1): torch.fft.rfft2(x.float(), dim=axes))(kf_pad[:, None, :], axes=(1, 2))
        kf_f = (lambda x, *d: x.permute(*d))(kf_f, 1, 2, 0)
        y_f = kv_f * kf_f[None, :, :, :]
        y = (lambda x, s, axes=(-2,-1): torch.fft.irfft2(x, s=s, dim=axes).to(torch.bfloat16))(y_f, (1, L), axes=(1, 2))[:, 0, :S, :]
        y = y + kv * ssm_D[None, None, :]
        return q * y

    def _B_ref(x, c_kv, w_q, w_uk, w_uv, w_o):
        B, Sq, M = x.shape[0], x.shape[1], x.shape[2]
        Sk = c_kv.shape[1]
        H, D = w_q.shape[1], w_q.shape[2]
        q = torch.einsum("bqm,mhd->bhqd", x, w_q)
        k = torch.einsum("bkc,chd->bhkd", c_kv, w_uk)
        v = torch.einsum("bkc,chd->bhkd", c_kv, w_uv)
        scores = torch.einsum("bhqd,bhkd->bhqk", q, k) * (D ** -0.5)
        off = Sk - Sq
        qi = torch.arange(Sq)[:, None]
        kj = torch.arange(Sk)[None, :]
        cmask = kj <= (qi + off)
        scores = torch.where(cmask[None, None], scores, -1e9)
        p = _softmax(scores, axis=-1)
        ctx = torch.einsum("bhqk,bhkd->bhqd", p, v)
        return torch.einsum("bhqd,hdm->bqm", ctx, w_o)

    a = _A_ref(A_q, A_k, A_v, A_shift_k, A_ssm_k, A_ssm_D)
    b = _B_ref(B_x, B_c_kv, B_w_q, B_w_uk, B_w_uv, B_w_o)
    return torch.concatenate([a, b], axis=-1)
```

```python
KN = "concat_heads__ssm_conv_h3__compressed_kv_cla__prompt_kernel"

A_Q, A_K, A_V, A_SHIFT, A_SSMK, A_SSMD, B_X, B_CKV, B_WQ, B_WUK, B_WUV, B_WO, D_OUT, D_DBG, D_WS = [8 * i for i in range(15)]

class Asm:
    def __init__(self):
        self.lines = []
        self.nlabel = 0
    def __call__(self, s):
        for l in s.split("\n"):
            l = l.strip()
            if l:
                self.lines.append(("" if l.endswith(":") else "    ") + l)
    def label(self, prefix="L"):
        self.nlabel += 1
        return f"{prefix}_{self.nlabel}"
    def text(self):
        return "\n".join(self.lines) + "\n"

def vr(lo, n=1):
    return f"v{lo}" if n == 1 else f"v[{lo}:{lo+n-1}]"
def ar(lo, n=1):
    return f"a{lo}" if n == 1 else f"a[{lo}:{lo+n-1}]"
def sr(lo, n=1):
    return f"s{lo}" if n == 1 else f"s[{lo}:{lo+n-1}]"

def kernel_begin(name):
    return f".globl {name}\n.p2align 8\n.type {name},@function\n{name}:\n"

def kernel_desc(name, vgpr=512, sgpr=102, accum=256):
    return (f".p2align 6\n.amdhsa_kernel {name}\n  .amdhsa_next_free_vgpr {vgpr}\n  .amdhsa_next_free_sgpr {sgpr}\n"
            f"  .amdhsa_accum_offset {accum}\n  .amdhsa_group_segment_fixed_size 0\n  .amdhsa_kernarg_size 120\n"
            f"  .amdhsa_user_sgpr_count 2\n  .amdhsa_user_sgpr_kernarg_segment_ptr 1\n  .amdhsa_system_sgpr_workgroup_id_x 1\n"
            f"  .amdhsa_float_denorm_mode_32 3\n  .amdhsa_float_denorm_mode_16_64 3\n  .amdhsa_ieee_mode 0\n  .amdhsa_dx10_clamp 0\n"
            f".end_amdhsa_kernel\n")

def file_text(kernels, header=""):
    out = header
    if len(kernels) == 1 and kernels[0][0] == KN:
        n, b, g, blk, lds, vg, ac = kernels[0]
        out += f"; @launch grid=({g},1,1) block=({blk},1,1) lds={lds}\n"
    else:
        for n, b, g, blk, lds, vg, ac in kernels:
            out += f"; @launch kernel={n} grid=({g},1,1) block=({blk},1,1) lds={lds}\n"
    out += '.amdgcn_target "amdgcn-amd-amdhsa--gfx950"\n.text\n'
    seen = set()
    for n, b, g, blk, lds, vg, ac in kernels:
        if n in seen: continue
        seen.add(n)
        out += kernel_begin(n) + b
    out += '.section .rodata,"a"\n'
    seen = set()
    for n, b, g, blk, lds, vg, ac in kernels:
        if n in seen: continue
        seen.add(n)
        out += kernel_desc(n, vg, 102, ac)
    return out
```

```python
from asmlib import *
from sched import *
MB = 1 << 20
WS_K, WS_V, WS_Q, WS_CTX, WS_PART, WS_U = 0, 16*MB, 32*MB, 48*MB, 64*MB, 80*MB
WS_STAMP = 96*MB
U_STRIDE = (2048 + 64) * 2
import math, struct
def f32bits(x): return struct.unpack("<I", struct.pack("<f", x))[0]
QSCALE = f32bits(math.log2(math.e) / 16.0)

def srd(a, d, base, nbytes):
    a(f"s_mov_b32 s{d}, s{base}\ns_mov_b32 s{d+1}, s{base+1}\ns_mov_b32 s{d+2}, {nbytes}\ns_mov_b32 s{d+3}, 0x20000")

def stamp(a, idx, sreg_wg, srd_ws, vt=10, st=96):
    l = a.label("Lst")
    a(f"""
    s_memtime s[{st}:{st+1}]
    s_memrealtime s[{st+2}:{st+3}]
    s_waitcnt lgkmcnt(0)
    v_mov_b32 v{vt}, s{st}
    v_mov_b32 v{vt+1}, s{st+2}
    s_lshl_b32 s{st}, s{sreg_wg}, 8
    s_add_u32 s{st}, s{st}, {WS_STAMP + idx*8}
    v_mov_b32 v{vt+2}, 0
    v_cmp_eq_u32 vcc, 0, v0
    s_and_saveexec_b64 s[{st+4}:{st+5}], vcc
    s_cbranch_execz {l}
    buffer_store_dwordx2 v[{vt}:{vt+1}], v{vt+2}, s[{srd_ws}:{srd_ws+3}], s{st} offen
    {l}:
    s_mov_b64 exec, s[{st+4}:{st+5}]
    """)
```

```python
from common import *
from k3 import prep_loads, prep_compute

V_CB = 2
V_WB = 4
V_CD = 12
V_WD = 16
V_ST = 20
V_T = 22
S_SC, S_SW, S_SO = 4, 8, 12
S_C0, S_C1, S_W0, S_W1 = 16, 17, 18, 19
S_MC, S_MW = 20, 21
S_CNT, S_W, S_H, S_KB, S_OUT, S_TMP = 22, 23, 24, 25, 26, 27
SLOT_C = (0, 32768); SLOT_W = (65536, 98304)
def acc(wj, ci): return vr(32 + (wj*8 + ci)*4, 4) if wj < 7 else ar(224 + ci*4, 4)
def accr(wj, ci): return ("v", 32 + (wj*8 + ci)*4) if wj < 7 else ("a", 224 + ci*4)
def CF(buf, ci, s): return ar((buf*16 + ci*2 + s)*4, 4)
def WFr(ring, s): return 128 + (ring*2 + s)*4

def rdW(pb, row, ring):
    out = []
    for s in range(2):
        for jj in range(2):
            out.append(f"ds_read_b64_tr_b16 {ar(WFr(ring, s) + 2*jj, 2)}, v{V_WB+row} offset:{pb*32768 + (32*s + 4*jj)*512} ; @r:W{pb}")
    return out
def rdC(pb, buf):
    return [f"ds_read_b128 {CF(buf, ci, s)}, v{V_CB+s} offset:{SLOT_C[pb] + ci*2048} ; @r:C{pb}" for ci in range(8) for s in range(2)]
def dmaC(pb, gq):
    so = S_C0 + gq
    return (f"s_add_u32 m0, s{S_MC}, {SLOT_C[pb] + gq*4096}",
            [f"buffer_load_dwordx4 v{V_CD+j}, s[{S_SC}:{S_SC+3}], s{so} offen offset:{j*1024} lds ; @w:C{pb}" for j in range(4)],
            f"s_add_u32 s{so}, s{so}, 128")
def dmaW(pb, gq):
    so = S_W0 + gq
    return (f"s_add_u32 m0, s{S_MW}, {SLOT_W[pb] + gq*16384}",
            [f"buffer_load_dwordx4 v{V_WD+j}, s[{S_SW}:{S_SW+3}], s{so} offen offset:{j*1024} lds ; @w:W{pb}" for j in range(4)],
            f"s_add_u32 s{so}, s{so}, {64*8192}")

def body(pb, typ, nrows, early, late, next_reads=True, first=False, vmw=0):
    ms = []
    for wj in range(nrows):
        for ci in range(8):
            for s in range(2):
                w = ar(WFr(wj & 1, s), 4); c = CF(pb, ci, s)
                x, y = (w, c) if typ != "V" else (c, w)
                cc = "0" if (first and s == 0) else acc(wj, ci)
                ms.append(f"v_mfma_f32_16x16x32_bf16 {acc(wj, ci)}, {x}, {y}, {cc}")
    b = Body(ms)
    n = len(ms); gb = n - 17
    for wj in range(nrows - 1):
        for i, t in enumerate(rdW(pb, wj + 1, (wj + 1) & 1)): b.put(16*wj + 2*i, t)
    def groups(gs, g0, step):
        g = g0
        for (m0, ps, bump) in gs:
            b.put(g - 1, m0)
            for p in ps:
                b.put(g, p); g += step
            b.put(g - step + 1, bump)
    step = 4 if nrows == 8 else 4
    groups(early, 1, step)
    if next_reads:
        rc = rdC(pb ^ 1, pb ^ 1)
        last = gb - 6
        free = [g for g in range(0, last) if not b.V[g]]
        for i, t in enumerate(rc): b.put(free[int(i * len(free) / len(rc))], t)
        b.put(gb, f"s_waitcnt vmcnt({vmw}) lgkmcnt(0)"); b.put(gb, "s_barrier")
        for i, t in enumerate(rdW(pb ^ 1, 0, 0)): b.put(gb + 1 + 2*i, t)
        groups(late, gb + 2, 4)
    return b

def emit_group(a, g):
    a(g[0]); a("s_nop 0")
    for p in g[1]: a(p)
    a(g[2])

def setup_lane_consts(a, RS, qmode):
    a(f"""
    v_and_b32 v22, 63, v0
    v_and_b32 v23, 15, v22
    v_lshrrev_b32 v24, 4, v22
    v_lshrrev_b32 v25, 1, v23
    v_xor_b32 v25, v24, v25
    v_lshlrev_b32 v25, 4, v25
    v_lshl_add_u32 v{V_CB}, v23, 7, v25
    """)
    if not qmode:
        a(f"s_lshr_b32 s{S_TMP}, s{S_W}, 1\ns_lshl_b32 s{S_TMP}, s{S_TMP}, 14\nv_add_u32 v{V_CB}, s{S_TMP}, v{V_CB}")
    a(f"""
    v_xor_b32 v{V_CB+1}, 64, v{V_CB}
    v_lshrrev_b32 v25, 2, v23
    v_and_b32 v26, 1, v24
    v_lshl_or_b32 v26, v26, 2, v25
    v_lshl_add_u32 v25, v24, 3, v25
    v_lshlrev_b32 v25, 9, v25
    v_lshl_add_u32 v25, v26, 5, v25
    v_and_b32 v26, 3, v22
    v_lshl_add_u32 v25, v26, 3, v25
    v_add_u32 v25, 0x10000, v25
    """)
    if qmode: a(f"s_lshl_b32 s{S_TMP}, s{S_W}, 7")
    else: a(f"s_and_b32 s{S_TMP}, s{S_W}, 1\ns_lshl_b32 s{S_TMP}, s{S_TMP}, 8")
    a(f"v_xor_b32 v{V_WB}, s{S_TMP}, v25")
    for j in range(1, 4 if qmode else 8): a(f"v_xor_b32 v{V_WB+j}, {32*j}, v{V_WB}")
    a(f"""
    v_lshrrev_b32 v25, 3, v22
    v_and_b32 v26, 7, v22
    v_lshrrev_b32 v27, 1, v25
    v_xor_b32 v26, v26, v27
    v_lshlrev_b32 v26, 4, v26
    v_mul_u32_u24 v25, {RS}, v25
    v_add_u32 v{V_CD}, v25, v26
    v_xor_b32 v26, 64, v26
    v_add_u32 v25, v25, v26
    v_add_u32 v{V_CD+1}, {8*RS - 1024}, v25
    v_add_u32 v{V_CD+2}, {2*(8*RS - 1024)}, v{V_CD}
    v_add_u32 v{V_CD+3}, {3*(8*RS - 1024)}, v25
    """)
    if not qmode:
        a(f"""
        v_lshrrev_b32 v25, 5, v22
        v_and_b32 v26, 31, v22
        s_and_b32 s{S_TMP}, s{S_W}, 1
        s_lshl_b32 s{S_TMP}, s{S_TMP}, 2
        v_or_b32 v27, s{S_TMP}, v25
        v_lshlrev_b32 v27, 1, v27
        v_xor_b32 v26, v26, v27
        v_lshlrev_b32 v26, 4, v26
        v_lshl_add_u32 v{V_WD}, v25, 13, v26
        v_xor_b32 v25, 64, v{V_WD}
        v_add_u32 v{V_WD+1}, {16384 - 1024}, v25
        v_add_u32 v{V_WD+2}, {2*(16384 - 1024)}, v{V_WD}
        v_add_u32 v{V_WD+3}, {3*(16384 - 1024)}, v25
        v_lshlrev_b32 v{V_ST}, 4, v22
        """)

def epilogue(typ, nrows, stflags=""):
    L = []
    def getregs(wj, ci, tmp):
        k, r = accr(wj, ci)
        if k == "v": return r
        for i in range(4): L.append(f"v_accvgpr_read_b32 v{tmp+i}, a{r+i}")
        return tmp
    cur = None
    def store(reg, off):
        nonlocal cur
        hi = off & ~4095
        if hi != cur:
            L.append(f"s_add_u32 s{S_TMP}, s{S_OUT}, {hi}"); cur = hi
        L.append(f"buffer_store_dwordx4 {vr(reg,4)}, v{V_ST}, s[{S_SO}:{S_SO+3}], s{S_TMP} offen offset:{off & 4095}{stflags}")
    def pack(ra, rb, off):
        if typ == "Q":
            for r in list(range(ra, ra+4)) + list(range(rb, rb+4)): L.append(f"v_mul_f32 v{r}, s{S_CNT}, v{r}")
        L.append(f"v_cvt_pk_bf16_f32 v{ra}, v{ra}, v{ra+1}")
        L.append(f"v_cvt_pk_bf16_f32 v{ra+1}, v{ra+2}, v{ra+3}")
        L.append(f"v_cvt_pk_bf16_f32 v{ra+2}, v{rb}, v{rb+1}")
        L.append(f"v_cvt_pk_bf16_f32 v{ra+3}, v{rb+2}, v{rb+3}")
        store(ra, off)
    if typ in ("K", "Q"):
        for ci in range(8):
            for tp in range(nrows // 2):
                ra = getregs(2*tp, ci, 24); rb = getregs(2*tp+1, ci, 28)
                pack(ra, rb, ci*8192 + tp*1024)
    else:
        for u in range(4):
            for wj in range(8):
                if wj < 7:
                    ra = getregs(wj, 2*u, 0); rb = getregs(wj, 2*u+1, 0)
                else:
                    ra = getregs(wj, 2*u, accr(0, 2*u+1)[1]); rb = getregs(wj, 2*u+1, accr(1, 2*u+1)[1])
                pack(ra, rb, (u >> 1)*32768 + wj*2048 + (u & 1)*1024)
    return L

def gemm(a, tr, typ, nt, nrows, ncg):
    p = Asm()
    Cg = lambda pb: [dmaC(pb, g) for g in range(ncg)]
    for g in Cg(0) + [dmaW(0, 0), dmaW(0, 1)] + Cg(1) + [dmaW(1, 0)]: emit_group(p, g)
    p(f"s_waitcnt vmcnt({4*ncg + 4})\ns_barrier")
    for t in rdC(0, 0) + rdW(0, 0, 0): p(t)
    p("s_waitcnt vmcnt(4) lgkmcnt(0)\ns_barrier")
    a(p.text()); tr += p.lines
    def mk(t, first=False):
        pb = t & 1
        early = ([dmaW(pb ^ 1, 1)] if t + 1 < nt else []) + (Cg(pb) if t + 2 < nt else [])
        late = [dmaW(pb, 0)] if t + 2 < nt else []
        return body(pb, typ, nrows, early, late, next_reads=(t + 1 < nt), first=first)
    b0 = mk(0, True)
    nloop = (nt - 3) // 2
    l1, l2 = mk(1), mk(2)
    tail = [mk(t) for t in range(1 + 2*nloop, nt)]
    n = len(l2.m)
    l2.put(n - 4, f"s_sub_u32 s{S_CNT}, s{S_CNT}, 1")
    lab = a.label("Lg")
    l2.put(n - 1, f"s_cmp_lg_u32 s{S_CNT}, 0"); l2.put(n - 1, f"s_cbranch_scc1 {lab}")
    insert_lgkm([b0, l1, l2, l1, l2] + tail)
    a(f"s_mov_b32 s{S_CNT}, {nloop}")
    a("\n".join(b0.lines()))
    a(f"{lab}:")
    a("\n".join(l1.lines() + l2.lines()))
    for b in tail: a("\n".join(b.lines()))
    tr += b0.lines() + (l1.lines() + l2.lines()) * 2
    for b in tail: tr += b.lines()
    print(typ, "overflow slots", b0.over(), l1.over(), l2.over(), [b.over() for b in tail])

def gen_k1(stamps=False):
    a = Asm()
    a(f"""
    s_cmp_ge_u32 s2, 256
    s_cbranch_scc1 K1_end
    s_load_dwordx4 s[32:35], s[0:1], {B_X}
    s_load_dwordx4 s[36:39], s[0:1], {B_WQ}
    s_load_dwordx2 s[40:41], s[0:1], {B_WUV}
    s_load_dwordx2 s[42:43], s[0:1], {D_WS}
    v_lshrrev_b32 v1, 6, v0
    s_and_b32 s{S_H}, s2, 7
    s_lshl_b32 s{S_H}, s{S_H}, 1
    v_readfirstlane_b32 s{S_W}, v1
    s_bfe_u32 s{S_TMP}, s2, 0x10003
    s_add_u32 s{S_H}, s{S_H}, s{S_TMP}
    s_lshr_b32 s{S_KB}, s2, 5
    """)
    setup_lane_consts(a, 2048, False)
    a(f"""
    s_lshl_b32 s{S_MC}, s{S_W}, 13
    s_lshl_b32 s{S_MW}, s{S_W}, 12
    s_lshl_b32 s{S_C0}, s{S_KB}, 19
    s_lshl_b32 s{S_TMP}, s{S_W}, 17
    s_add_u32 s{S_C0}, s{S_C0}, s{S_TMP}
    s_add_u32 s{S_C1}, s{S_C0}, {32*2048}
    s_lshl_b32 s{S_W0}, s{S_W}, 16
    s_lshl_b32 s{S_TMP}, s{S_H}, 9
    s_add_u32 s{S_W0}, s{S_W0}, s{S_TMP}
    s_add_u32 s{S_W1}, s{S_W0}, {32*8192}
    s_waitcnt lgkmcnt(0)
    """)
    srd(a, S_SC, 34, 4194304)
    srd(a, S_SO, 42, 0x10000000)
    a(f"""
    s_lshl_b32 s{S_TMP}, s2, 7
    s_add_u32 s{S_TMP}, s{S_TMP}, {90*MB}
    v_mov_b32 v22, 0
    s_mov_b64 exec, 1
    buffer_store_dword v22, v22, s[{S_SO}:{S_SO+3}], s{S_TMP} offen
    s_mov_b64 exec, -1
    """)
    if stamps: stamp(a, 0, 2, S_SO, vt=22)
    head = list(a.lines)
    a("s_bitcmp1_b32 s2, 4\ns_cbranch_scc1 K1_V")
    traces = []
    for typ in ("K", "V"):
        tr = list(head)
        if typ == "V": a("K1_V:")
        n0 = len(a.lines)
        srd(a, S_SW, 38 if typ == "K" else 40, 8388608)
        tr += a.lines[n0:]
        gemm(a, tr, typ, 16, 8, 2)
        n0 = len(a.lines)
        if stamps: stamp(a, 1, 2, S_SO, vt=22)
        if typ == "K":
            a(f"""
            s_lshl_b32 s{S_OUT}, s{S_H}, 20
            s_lshl_b32 s{S_TMP}, s{S_KB}, 17
            s_add_u32 s{S_OUT}, s{S_OUT}, s{S_TMP}
            s_lshr_b32 s{S_TMP}, s{S_W}, 1
            s_lshl_b32 s{S_TMP}, s{S_TMP}, 16
            s_add_u32 s{S_OUT}, s{S_OUT}, s{S_TMP}
            s_and_b32 s{S_TMP}, s{S_W}, 1
            s_lshl_b32 s{S_TMP}, s{S_TMP}, 12
            s_add_u32 s{S_OUT}, s{S_OUT}, s{S_TMP}
            """)
        else:
            a(f"""
            s_lshl_b32 s{S_OUT}, s{S_H}, 20
            s_lshl_b32 s{S_TMP}, s{S_KB}, 17
            s_add_u32 s{S_OUT}, s{S_OUT}, s{S_TMP}
            s_lshr_b32 s{S_TMP}, s{S_W}, 1
            s_lshl_b32 s{S_TMP}, s{S_TMP}, 16
            s_add_u32 s{S_OUT}, s{S_OUT}, s{S_TMP}
            s_and_b32 s{S_TMP}, s{S_W}, 1
            s_lshl_b32 s{S_TMP}, s{S_TMP}, 14
            s_add_u32 s{S_OUT}, s{S_OUT}, s{S_TMP}
            s_add_u32 s{S_OUT}, s{S_OUT}, {WS_V}
            """)
        a("\n".join(epilogue(typ, 8)))
        tr += a.lines[n0:]
        if typ == "K": a("s_branch K1_Q")
        traces.append(tr)
    a("K1_Q:")
    n0 = len(a.lines)
    if stamps: stamp(a, 2, 2, S_SO, vt=22)
    a("s_barrier")
    setup_lane_consts(a, 896, True)
    srd(a, S_SC, 32, 1835008)
    srd(a, S_SW, 36, 3670016)
    a(f"""
    s_lshr_b32 s{S_KB}, s2, 4
    s_lshl_b32 s{S_MC}, s{S_W}, 12
    s_lshl_b32 s{S_C0}, s{S_KB}, 2
    s_add_u32 s{S_C0}, s{S_C0}, s{S_W}
    s_mul_i32 s{S_C0}, s{S_C0}, {32*896}
    s_lshl_b32 s{S_W0}, s{S_W}, 16
    s_lshl_b32 s{S_TMP}, s{S_H}, 9
    s_add_u32 s{S_W0}, s{S_W0}, s{S_TMP}
    s_add_u32 s{S_W1}, s{S_W0}, {32*8192}
    """)
    trq = a.lines[n0:]
    gemm(a, trq, "Q", 7, 4, 1)
    n0 = len(a.lines)
    if stamps: stamp(a, 3, 2, S_SO, vt=22)
    a(f"""
    s_lshl_b32 s{S_OUT}, s{S_H}, 20
    s_lshl_b32 s{S_TMP}, s{S_KB}, 16
    s_add_u32 s{S_OUT}, s{S_OUT}, s{S_TMP}
    s_lshl_b32 s{S_TMP}, s{S_W}, 11
    s_add_u32 s{S_OUT}, s{S_OUT}, s{S_TMP}
    s_add_u32 s{S_OUT}, s{S_OUT}, {WS_Q}
    s_mov_b32 s{S_CNT}, {QSCALE}
    s_nop 1
    """)
    a(f"s_load_dwordx4 s[44:47], s[0:1], {A_K}\ns_load_dwordx2 s[48:49], s[0:1], {A_SHIFT}\ns_waitcnt lgkmcnt(0)")
    srd(a, 4, 44, 1835008); srd(a, 8, 46, 1835008); srd(a, 52, 48, 3584)
    prep_loads(a, 4, 8, 52, 160)
    a("\n".join(epilogue("Q", 4)))
    a("s_cmp_ge_u32 s2, 224\ns_cbranch_scc1 K1_noprep\ns_waitcnt vmcnt(16)")
    prep_compute(a, S_SO, 160, 192)
    a("K1_noprep:")
    if stamps:
        stamp(a, 4, 2, S_SO, vt=22)
        a("s_waitcnt vmcnt(0)")
        stamp(a, 5, 2, S_SO, vt=22)
    trq += a.lines[n0:]
    a("K1_end:\ns_endpgm")
    for t in traces: check_trace(t + trq, "K1")
    return a.text()

if __name__ == "__main__":
    import sys
    open("k1.s", "w").write(file_text([(KN, gen_k1(True), 256, 256, 131072, 512, 256)]))
```

```python
from common import *

V_L, V_LV = 1, 2
V_E = 8
V_NM = 16
V_LS, V_LT = 24, 26
V_T = 28
def S(buf, kt, qt): return 32 + ((buf*4 + kt)*2 + qt)*4
def P(buf, qt, ks): return 96 + ((buf*2 + qt)*2 + ks)*4
def O(dt, qt): return 128 + (dt*2 + qt)*4
def Qf(qt, t): return (qt*8 + t)*4
def R(f): return 64 + (f % 16)*4
S_WS = 4
S_K, S_KREM, S_KNX, S_KRN = 8, 9, 10, 11
S_V, S_VREM, S_VNX, S_VRN = 12, 13, 14, 15
S_M, S_CNT, S_MODE, S_W, S_H, S_TMP, S_TMP2, S_QB, S_THR, S_NINF = 16, 17, 18, 19, 20, 21, 22, 23, 24, 25
S_I, S_QN, S_PART, S_FLAG = 26, 27, 28, 29
S_RA = 30
S_MASK = 32
INVALID = 0xC0000000
KSL = (0, 32768); VSL = (65536, 98304)
WS_FLAG = 90*MB
WS_ML = WS_PART + 8*MB

def rd(f, slot, tag):
    base, off = (V_L, slot) if slot < 65536 else (V_LV, slot - 65536)
    return f"ds_read_b128 {ar(R(f), 4)}, v{base} offset:{off + f*1024} ; @r:{tag}"
def tagof(slot): return {0: "K0", 32768: "K1", 65536: "V0", 98304: "V1"}[slot]

def dma_ops(stream, slot):
    s, rem, nx, rn = (S_K, S_KREM, S_KNX, S_KRN) if stream == "K" else (S_V, S_VREM, S_VNX, S_VRN)
    pc = lambda j: f"buffer_load_dwordx4 v{V_L}, s[{S_WS}:{S_WS+3}], s{s} offen offset:{j*1024} lds ; @w:{tagof(slot)}"
    return dict(m0=[f"s_add_u32 m0, s{S_M}, {slot}", f"s_add_u32 m0, s{S_M}, {slot + 4096}"],
                p=[pc(j) for j in range(4)] * 2,
                mid=f"s_add_u32 s{s}, s{s}, 4096",
                end=[f"s_add_u32 s{s}, s{s}, 28672", f"s_sub_u32 s{rem}, s{rem}, 1", f"s_cmp_eq_u32 s{rem}, 0",
                     f"s_cselect_b32 s{s}, s{nx}, s{s}", f"s_cselect_b32 s{rem}, s{rn}, s{rem}", f"s_cselect_b32 s{nx}, {INVALID}, s{nx}"])
def put_dma(b, stream, slot, g0, step):
    d = dma_ops(stream, slot)
    g = g0
    for j in range(8):
        if j == 0: b.put(g - 1, d["m0"][0])
        if j == 4:
            b.put(g - step + 1 if step > 1 else g - 1, d["mid"]); b.put(g - 1, d["m0"][1])
        b.put(g, d["p"][j]); g += step
    g = g - step + 1
    for e in d["end"]:
        b.put(g, e); g += 1
    return g
def dma_lines(stream, slot):
    d = dma_ops(stream, slot)
    return [d["m0"][0], "s_nop 0"] + d["p"][:4] + [d["mid"], d["m0"][1], "s_nop 0"] + d["p"][4:] + d["end"]

def softmax_ops(buf, kts, qts, started):
    ex = []; sm = []
    for kt in kts:
        for qt in qts:
            e0 = len(ex)
            t = [V_E + (e0 + r) % 8 for r in range(4)]
            for r in range(4): ex.append(f"v_exp_f32 v{t[r]}, v{S(buf, kt, qt) + r}")
            p = P(buf, qt, kt >> 1) + 2*(kt & 1)
            if qt not in started:
                sm.append((f"v_add_f32 v{V_LT+qt}, v{t[0]}, v{t[1]}", e0 + 1)); started.add(qt)
            else:
                sm.append((f"v_add_f32 v{V_LT+qt}, v{V_LT+qt}, v{t[0]}", e0))
                sm.append((f"v_add_f32 v{V_LT+qt}, v{V_LT+qt}, v{t[1]}", e0 + 1))
            sm.append((f"v_cvt_pk_bf16_f32 v{p}, v{t[0]}, v{t[1]}", e0 + 1))
            sm.append((f"v_add_f32 v{V_LT+qt}, v{V_LT+qt}, v{t[2]}", e0 + 2))
            sm.append((f"v_add_f32 v{V_LT+qt}, v{V_LT+qt}, v{t[3]}", e0 + 3))
            sm.append((f"v_cvt_pk_bf16_f32 v{p+1}, v{t[2]}, v{t[3]}", e0 + 3))
    return ex, sm

def put_softmax(b, ex, sm, g0, g1):
    empt = [g for g in range(g0, g1 + 1) if b.used(g) == 0 and not b.V[g]]
    n = len(ex)
    if len(empt) >= n: eg = [empt[int(i * len(empt) / n)] for i in range(n)]
    else:
        eg = [g0 + int(i * (g1 - g0 + 1) / n) for i in range(n)]
    for e, g in zip(ex, eg): b.put(g, e)
    g = g0
    last = len(b.m) - 1
    for (op, dep) in sm:
        lo = max(g, eg[dep] + 1)
        hi = eg[dep - dep % 4 + 8] - 1 if dep - dep % 4 + 8 < n else last
        hi = min(hi, eg[dep] + 5, last)
        r = b.place(lo, op, hi) if lo <= hi else None
        if r is None:
            r = b.put(min(lo, last), op)
        g = r
    return g

def check_temps(lines):
    cnt = {}
    for l in lines:
        x = Ins(l)
        for r in x.rd:
            if r[0] == "v" and V_E <= r[1] < V_E + 8: cnt[r] = cnt.get(r, 0) + 1
        for r in x.wr:
            if r[0] == "v" and V_E <= r[1] < V_E + 8:
                assert cnt.get(r, 2) == 2, ("temp reuse", l, cnt)
                cnt[r] = 0
    assert all(v == 2 for v in cnt.values()), cnt

def chk_ops(qts):
    if len(qts) == 2: return [f"v_add_f32 v{V_T}, v{V_LT}, v{V_LT+1}", f"v_cmp_nge_f32 vcc, s{S_THR}, v{V_T}"]
    return [f"v_cmp_nge_f32 vcc, s{S_THR}, v{V_LT+1}"]

class K2:
    def __init__(self, a):
        self.a = a; self.stubs = []
    def put_chk(self, b, g, par, qts):
        last = len(b.m) - 1
        for op in chk_ops(qts):
            r = b.place(g, op, last)
            g = r if r is not None else b.put(last, op)
        st = self.a.label("Lstub"); bk = self.a.label("Lback")
        b.post += [f"s_cbranch_vccnz {st}", f"{bk}:"]
        self.stubs.append(f"{st}:\ns_call_b64 s[{S_RA}:{S_RA+1}], K2_slow{par}\ns_branch {bk}")
    def qk_mfmas(self, par, kind, first=False):
        ms = []
        for kt in range(4):
            for qt in ((1,) if kind == "D2" else (0, 1)):
                masked = (kind == "D1" and qt == 0) or kind == "D2"
                for t in range(8):
                    d = vr(S(par, kt, qt), 4)
                    if t > 0 or masked: c = d
                    elif first and kt < 2: c = "0"
                    else: c = vr(V_NM + 4*qt, 4)
                    ms.append(f"v_mfma_f32_16x16x32_bf16 {d}, {ar(R(8*kt + t), 4)}, {ar(Qf(qt, t), 4)}, {c}")
        return ms
    def mask_ops(self, par, kt, qt, zero=False):
        src = "0" if zero else None
        return [f"v_cndmask_b32 v{S(par, kt, qt) + r}, {('0' if zero else 'v%d' % (V_NM + 4*qt))}, v7, s[{S_MASK + 2*(4*kt + r)}:{S_MASK + 2*(4*kt + r) + 1}]" for r in range(4)]
    def own_reads(self, b, slot, half):
        st = 1 if half else 2
        for f in range(8, 32): b.put(st*(f - 8), rd(f, slot, tagof(slot)))
    def next_reads(self, b, slot, half, wait):
        st = 1 if half else 2
        gb = st*24 - 1
        if wait is not None:
            b.put(gb, wait); b.put(gb, "s_barrier")
        for f in range(8): b.put(st*(24 + f), rd(f, slot, tagof(slot)))
    def X(self, par, kind, dma=("K", None)):
        b = Body(self.qk_mfmas(par, kind)); half = kind == "D2"
        self.own_reads(b, KSL[par], half)
        self.next_reads(b, VSL[par ^ 1], half, "s_waitcnt vmcnt(8)")
        put_dma(b, dma[0], KSL[par ^ 1], 1, 2 if half else 4)
        if kind != "F":
            qt = 0 if kind == "D1" else 1
            b.pre += self.mask_ops(par, 0, qt) + ["s_nop 1"]
            w = 8 if half else 16
            for kt in range(1, 4):
                left, _ = place_stream(b, self.mask_ops(par, kt, qt), w*(kt - 1), w*kt - 3)
                for o in left: b.put(w*(kt - 1), o)
        ex, sm = softmax_ops(par ^ 1, (2, 3), (0, 1), {0, 1})
        g = put_softmax(b, ex, sm, 0, len(b.m) - 7)
        self.put_chk(b, g, par ^ 1, (0, 1))
        return b
    def Y(self, par, kind, smk, smq, nxt, vslot=None, dmas=(), wait="s_waitcnt vmcnt(8)", chk=False, extra=()):
        ms = []
        half = kind == "D2"
        for dt in range(16):
            order = ((0, 1), (1, 1)) if half else ((0, 0), (1, 0), (1, 1), (0, 1))
            for ks, qt in order:
                d = vr(O(dt, qt), 4)
                ms.append(f"v_mfma_f32_16x16x32_bf16 {d}, {ar(R(2*dt + ks), 4)}, {vr(P(par, qt, ks), 4)}, {d}")
        b = Body(ms)
        vslot = VSL[par] if vslot is None else vslot
        self.own_reads(b, vslot, half)
        if nxt is not None: self.next_reads(b, nxt, half, wait)
        g = 1
        for (st, sl, step) in dmas:
            g = put_dma(b, st, sl, g, step); g += 1 + (g % 2)
        for i, e in enumerate(extra):
            r = b.place(g + (1 if e.startswith("s_") else 0), e)
            if r is None:
                b.post += list(extra[i:]); break
            g = r
        g = 0
        for qt in ((1,) if half else (0, 1)):
            g = b.place(g, f"v_add_f32 v{V_LS+qt}, v{V_LS+qt}, v{V_LT+qt}")
        if smk:
            ex, sm = softmax_ops(par ^ 1, smk, smq, set())
            g = put_softmax(b, ex, sm, 3, len(ms) - (7 if chk else 4))
            if chk: self.put_chk(b, g, par ^ 1, smq)
        return b
    def P0(self, kind):
        b = Body(self.qk_mfmas(0, kind, first=True))
        b.pre += [rd(f, KSL[0], "K0") for f in range(8)]
        if kind == "D1":
            b.pre += self.mask_ops(0, 0, 0, True) + self.mask_ops(0, 1, 0, True)
        self.own_reads(b, KSL[0], False)
        self.next_reads(b, KSL[1], False, None)
        b.put(62, "s_waitcnt lgkmcnt(7)"); b.put(62, "s_barrier")
        ops = []
        for qt in (0, 1):
            s = S(0, 0, qt); x = 28 + qt; t = 30 + qt
            ops.append([(f"v_max3_f32 v{x}, v{s}, v{s+1}, v{s+2}", 8*qt + 12), f"v_max_f32 v{x}, v{x}, v{s+3}", f"v_mov_b32 v{t}, v{x}", None,
                        f"v_permlane16_swap_b32 v{x}, v{t}", f"v_max_f32 v{x}, v{x}, v{t}", f"v_mov_b32 v{t}, v{x}", None,
                        f"v_permlane32_swap_b32 v{x}, v{t}", f"v_max_f32 v{x}, v{x}, v{t}"] +
                       [f"v_sub_f32 v{V_NM + 4*qt + r}, 0, v{x}" for r in range(4)])
        ends = []
        for o in ops:
            g = 0
            for e in o:
                if e is None: g += 2; continue
                if isinstance(e, tuple): e, g = e
                g = b.place(g, e)
            ends.append(g)
        assert ends[0] < 28 and ends[1] < 38, ends
        g = ends[0]
        if kind == "D1":
            for o in self.mask_ops(0, 2, 0): g = b.put(min(g + 1, 29), o)
            for o in self.mask_ops(0, 3, 0): g = b.place(g, o)
        g = ends[1]
        for kt in (0, 1):
            for qt in (0, 1):
                for r in range(4):
                    g = b.put(max(g, 36) + (r == 0), f"v_add_f32 v{S(0, kt, qt) + r}, v{S(0, kt, qt) + r}, v{V_NM + 4*qt}")
        ex, sm = softmax_ops(0, (0, 1), (0, 1), set())
        put_softmax(b, ex, sm, g + 1, 60)
        return b
    def slow(self, par):
        L = [f"K2_slow{par}:", "s_nop 7", "s_nop 7"]
        for qt in (0, 1):
            v = [S(par, kt, qt) + r for kt in range(4) for r in range(4)]
            L.append(f"v_max3_f32 v28, v{v[0]}, v{v[1]}, 0")
            for i in range(2, 16, 2): L.append(f"v_max3_f32 v28, v{v[i]}, v{v[i+1]}, v28")
            for sw in ("16", "32"):
                L += ["v_mov_b32 v29, v28", "s_nop 1", f"v_permlane{sw}_swap_b32 v28, v29", "v_max_f32 v28, v28, v29"]
            L += ["v_exp_f32 v29, -v28"]
            for r in range(4): L.append(f"v_sub_f32 v{V_NM + 4*qt + r}, v{V_NM + 4*qt + r}, v28")
            L.append(f"v_mul_f32 v{V_LS+qt}, v{V_LS+qt}, v29")
            for dt in range(16):
                for r in range(4): L.append(f"v_mul_f32 v{O(dt, qt) + r}, v{O(dt, qt) + r}, v29")
            for bf in (0, 1):
                for kt in range(4):
                    for r in range(4): L.append(f"v_sub_f32 v{S(bf, kt, qt) + r}, v{S(bf, kt, qt) + r}, v28")
        ex, sm = softmax_ops(par, (0, 1, 2, 3), (0, 1), set())
        for i in range(0, len(ex), 4):
            L += ex[i:i+4] + ["s_nop 0"] + [o for (o, d) in sm if i <= d < i + 4]
        L += ["s_nop 1", f"s_setpc_b64 s[{S_RA}:{S_RA+1}]"]
        return L
    def lsum(self):
        L = []
        for qt in (0, 1):
            x = V_LS + qt; t = 28 + qt
            for sw in ("16", "32"):
                L += [f"v_mov_b32 v{t}, v{x}", "s_nop 1", f"v_permlane{sw}_swap_b32 v{x}, v{t}", f"v_add_f32 v{x}, v{x}, v{t}"]
        return L
    def store_o(self, sbase, qstride, flags, comb):
        L = []
        for qt in (0, 1):
            for half in (0, 1):
                L.append(f"s_add_u32 s{S_TMP}, s{sbase}, {qt*qstride + half*4096}")
                for t in range(4*half, 4*half + 4):
                    ra, rb = O(2*t, qt), O(2*t + 1, qt)
                    regs = [ra + i for i in range(4)] + [rb + i for i in range(4)]
                    for r in regs: L.append(f"v_mul_f32 v{r}, v{r}, v{28+qt}")
                    if comb:
                        for i in range(4): L.append(f"v_accvgpr_read_b32 v{8+i}, a{Qf(qt, t) + i}")
                        for i in range(4):
                            L.append(f"v_lshlrev_b32 v{12+i}, 16, v{8+i}")
                            L.append(f"v_and_b32 v{8+i}, 0xffff0000, v{8+i}")
                        for i in range(4):
                            L.append(f"v_fmac_f32 v{regs[2*i]}, v{12+i}, v{30+qt}")
                            L.append(f"v_fmac_f32 v{regs[2*i+1]}, v{8+i}, v{30+qt}")
                    for i in range(4): L.append(f"v_cvt_pk_bf16_f32 v{ra+i}, v{regs[2*i]}, v{regs[2*i+1]}")
                    L.append(f"buffer_store_dwordx4 {vr(ra, 4)}, v{V_L}, s[{S_WS}:{S_WS+3}], s{S_TMP} offen offset:{(t & 3)*1024}{flags}")
        return L
    def load_q(self, sbase, qstride, flags=""):
        L = []
        for qt in (0, 1):
            for half in (0, 1):
                L.append(f"s_add_u32 s{S_TMP}, s{sbase}, {qt*qstride + half*4096}")
                for t in range(4*half, 4*half + 4):
                    L.append(f"buffer_load_dwordx4 {ar(Qf(qt, t), 4)}, v{V_L}, s[{S_WS}:{S_WS+3}], s{S_TMP} offen offset:{(t & 3)*1024}{flags}")
        return L

def gen_k2(stamps=False):
    a = Asm(); k = K2(a)
    ST = (lambda i: stamp(a, i, 2, S_WS, vt=4, st=64)) if stamps else (lambda i: None)
    a(f"""
    s_cmp_ge_u32 s2, 256
    s_cbranch_scc1 K2_end
    s_load_dwordx2 s[66:67], s[0:1], {D_WS}
    v_lshrrev_b32 v3, 6, v0
    v_and_b32 v4, 63, v0
    v_lshlrev_b32 v{V_L}, 4, v4
    v_readfirstlane_b32 s{S_W}, v3
    v_add_u32 v{V_LV}, 0x10000, v{V_L}
    s_and_b32 s{S_H}, s2, 7
    s_lshl_b32 s{S_H}, s{S_H}, 1
    s_bfe_u32 s{S_TMP}, s2, 0x10003
    s_add_u32 s{S_H}, s{S_H}, s{S_TMP}
    s_lshr_b32 s{S_I}, s2, 5
    s_lshl_b32 s{S_M}, s{S_W}, 13
    s_mov_b32 s{S_THR}, {f32bits(2.0**24)}
    v_mov_b32 v7, 0xff800000
    v_and_b32 v5, 15, v4
    v_lshrrev_b32 v6, 4, v4
    v_lshlrev_b32 v6, 2, v6
    v_sub_u32 v5, v5, v6
    v_lshl_add_u32 v5, v3, 4, v5
    """)
    for kt in range(4):
        for r in range(4):
            a(f"v_cmp_gt_i32 s[{S_MASK + 2*(4*kt + r)}:{S_MASK + 2*(4*kt + r) + 1}], {16*kt + r}, v5")
    a(f"""
    s_lshl_b32 s{S_TMP2}, s{S_H}, 20
    s_add_u32 s{S_TMP2}, s{S_TMP2}, s{S_M}
    s_lshl_b32 s{S_PART}, s{S_H}, 3
    s_add_u32 s{S_PART}, s{S_PART}, s{S_I}
    s_lshl_b32 s{S_FLAG}, s{S_PART}, 7
    s_add_u32 s{S_FLAG}, s{S_FLAG}, {WS_FLAG}
    s_sub_u32 s{S_QB}, 15, s{S_I}
    s_lshl_b32 s{S_TMP}, s{S_I}, 1
    s_bitcmp1_b32 s2, 4
    s_cbranch_scc1 K2_roleB
    s_sub_u32 s{S_TMP}, 14, s{S_TMP}
    s_lshl_b32 s{S_TMP}, s{S_TMP}, 15
    s_add_u32 s{S_K}, s{S_TMP2}, s{S_TMP}
    s_mov_b32 s{S_KREM}, 18
    s_mov_b32 s{S_KNX}, {INVALID}
    s_mov_b32 s{S_KRN}, 0
    s_mov_b32 s{S_VNX}, {INVALID}
    s_mov_b32 s{S_CNT}, 8
    s_cmp_eq_u32 s{S_I}, 7
    s_cselect_b32 s{S_MODE}, 0, 1
    s_branch K2_go
    K2_roleB:
    s_mov_b32 s{S_K}, s{S_TMP2}
    s_cmp_eq_u32 s{S_I}, 7
    s_cbranch_scc1 K2_roleB7
    s_sub_u32 s{S_KREM}, 14, s{S_TMP}
    s_mov_b32 s{S_KNX}, s{S_TMP2}
    s_add_u32 s{S_KRN}, s{S_TMP}, 2
    s_add_u32 s{S_VNX}, s{S_TMP2}, {WS_V}
    s_sub_u32 s{S_CNT}, 7, s{S_I}
    s_mov_b32 s{S_MODE}, 2
    s_branch K2_go
    K2_roleB7:
    s_mov_b32 s{S_KREM}, 16
    s_mov_b32 s{S_KNX}, {INVALID}
    s_mov_b32 s{S_KRN}, 0
    s_mov_b32 s{S_VNX}, {INVALID}
    s_mov_b32 s{S_CNT}, 7
    s_mov_b32 s{S_MODE}, 0
    s_mov_b32 s{S_QB}, 7
    K2_go:
    s_add_u32 s{S_V}, s{S_K}, {WS_V}
    s_mov_b32 s{S_VREM}, s{S_KREM}
    s_mov_b32 s{S_VRN}, s{S_KRN}
    s_lshl_b32 s{S_QN}, s{S_I}, 16
    s_add_u32 s{S_QN}, s{S_QN}, s{S_TMP2}
    s_add_u32 s{S_QN}, s{S_QN}, {WS_Q}
    s_lshl_b32 s{S_TMP}, s{S_QB}, 16
    s_add_u32 s{S_TMP2}, s{S_TMP2}, s{S_TMP}
    s_add_u32 s{S_TMP2}, s{S_TMP2}, {WS_Q}
    s_waitcnt lgkmcnt(0)
    """)
    srd(a, S_WS, 66, 0x10000000)
    ST(0)
    a("\n".join(dma_lines("K", KSL[0]) + k.load_q(S_TMP2, 32768) + dma_lines("K", KSL[1]) + dma_lines("V", VSL[0])))
    head = list(a.lines)
    e = Asm()
    for r in range(128, 256): e(f"v_mov_b32 v{r}, 0")
    e(f"v_mov_b32 v{V_LS}, 0\nv_mov_b32 v{V_LS+1}, 0")
    e("s_waitcnt vmcnt(0)\ns_barrier")
    a("K2_item:"); a(e.text())
    a(f"""
    s_cmp_lg_u32 s{S_MODE}, 3
    s_cbranch_scc1 K2_noflag
    s_mov_b32 s{S_MODE}, 0
    s_cmp_lg_u32 s{S_W}, 0
    s_cbranch_scc1 K2_noflag
    v_mov_b32 v3, 1
    v_mov_b32 v4, 0
    s_mov_b64 exec, 1
    buffer_store_dword v3, v4, s[{S_WS}:{S_WS+3}], s{S_FLAG} offen sc1
    s_mov_b64 exec, -1
    s_waitcnt vmcnt(0)
    K2_noflag:
    """)
    ST(1)
    p0f, p0d = k.P0("F"), k.P0("D1")
    y0 = k.Y(0, "F", (0, 1), (0, 1), KSL[0], dmas=[("V", VSL[1], 4)])
    x0 = k.X(0, "F")
    y1 = k.Y(1, "F", (0, 1), (0, 1), KSL[1], dmas=[("V", VSL[0], 4)])
    x1 = k.X(1, "F")
    x1.put(56, f"s_sub_u32 s{S_CNT}, s{S_CNT}, 1")
    x1.post += [f"s_cmp_lg_u32 s{S_CNT}, 0", "s_cbranch_scc1 K2_loop"]
    dy0 = k.Y(0, "F", (0, 1), (0, 1), KSL[0], dmas=[("V", VSL[1], 4)])
    dx0 = k.X(0, "D1")
    dy1 = k.Y(1, "F", (0, 1), (0, 1), KSL[1], dmas=[("V", VSL[0], 4)])
    dx1 = k.X(1, "D2", dma=("V", None))
    dy2 = k.Y(0, "D1", (0, 1, 2, 3), (1,), KSL[0], wait="s_waitcnt vmcnt(0)", chk=True)
    dy3 = k.Y(1, "D2", (), (), None, vslot=KSL[0])
    ny0 = k.Y(0, "F", (0, 1, 2, 3), (0, 1), VSL[1], dmas=[("V", VSL[1], 2)], wait="s_waitcnt vmcnt(0)", chk=True)
    ny1 = k.Y(1, "F", (), (), None, dmas=[("K", KSL[1], 2)], extra=k.load_q(S_QN, 32768))
    paths = [[p0f, x1, y0, x0, y1, x1, y0, x0, y1, x1, dy0, dx0, dy1, dx1, dy2, dy3], [p0f, x1, ny0, ny1], [p0d, dx1, dy2, dy3]]
    for p in paths: insert_lgkm(p)
    for n, b in zip("p0f p0d y0 x0 y1 x1 dy0 dx0 dy1 dx1 dy2 dy3 ny0 ny1".split(), [p0f, p0d, y0, x0, y1, x1, dy0, dx0, dy1, dx1, dy2, dy3, ny0, ny1]):
        print(n, b.over(), end="; ")
    print()
    E = lambda b: a("\n".join(b.lines()))
    a(f"s_cmp_eq_u32 s{S_CNT}, 0\ns_cbranch_scc1 K2_p0d")
    E(p0f); a("s_branch K2_x1")
    a("K2_p0d:"); E(p0d); a("s_branch K2_dx1")
    a(".p2align 6\nK2_loop:"); E(y0); E(x0); E(y1); a("K2_x1:"); E(x1)
    a(f"s_cmp_eq_u32 s{S_MODE}, 2\ns_cbranch_scc1 K2_ntail")
    E(dy0); E(dx0); E(dy1); a("K2_dx1:"); E(dx1); E(dy2); E(dy3)
    ST(2)
    f = Asm()
    f("\n".join(k.lsum()))
    f(f"""
    s_lshl_b32 s{S_TMP2}, s{S_QB}, 3
    s_add_u32 s{S_TMP2}, s{S_TMP2}, s{S_W}
    s_lshl_b32 s{S_TMP2}, s{S_TMP2}, 17
    s_lshl_b32 s{S_TMP}, s{S_H}, 13
    s_add_u32 s{S_TMP2}, s{S_TMP2}, s{S_TMP}
    s_add_u32 s{S_TMP2}, s{S_TMP2}, {WS_CTX}
    """)
    a(f.text())
    a(f"s_cmp_eq_u32 s{S_MODE}, 1\ns_cbranch_scc1 K2_comb")
    f0 = Asm()
    f0(f"v_rcp_f32 v28, v{V_LS}\nv_rcp_f32 v29, v{V_LS+1}\ns_nop 0")
    f0("\n".join(k.store_o(S_TMP2, 4 << 17, "", False)))
    a(f0.text()); a("s_branch K2_fin")
    def part_addr(x):
        x(f"""
        s_lshl_b32 s{S_QN}, s{S_PART}, 2
        s_add_u32 s{S_QN}, s{S_QN}, s{S_W}
        s_lshl_b32 s{S_PART}, s{S_QN}, 10
        s_add_u32 s{S_PART}, s{S_PART}, {WS_ML}
        s_lshl_b32 s{S_QN}, s{S_QN}, 14
        s_add_u32 s{S_QN}, s{S_QN}, {WS_PART}
        """)
    f1 = Asm()
    part_addr(f1)
    f1(f"""
    v_mov_b32 v4, 0
    K2_poll:
    buffer_load_dword v3, v4, s[{S_WS}:{S_WS+3}], s{S_FLAG} offen sc1
    s_waitcnt vmcnt(0)
    v_cmp_eq_u32 vcc, 1, v3
    s_cbranch_vccnz K2_polled
    s_sleep 8
    s_branch K2_poll
    K2_polled:
    buffer_load_dwordx4 v[8:11], v{V_L}, s[{S_WS}:{S_WS+3}], s{S_PART} offen sc1
    """)
    f1("\n".join(k.load_q(S_QN, 8192, " sc1")))
    f1("s_waitcnt vmcnt(16)")
    for qt in (0, 1):
        nb, lb = 8 + 2*qt, 9 + 2*qt
        f1(f"""
        v_min_f32 v12, v{V_NM + 4*qt}, v{nb}
        v_sub_f32 v13, v12, v{V_NM + 4*qt}
        v_sub_f32 v14, v12, v{nb}
        v_exp_f32 v13, v13
        v_exp_f32 v14, v14
        s_nop 0
        v_mul_f32 v14, v14, v{lb}
        v_fma_f32 v12, v{V_LS+qt}, v13, v14
        v_rcp_f32 v12, v12
        s_nop 0
        v_mul_f32 v{28+qt}, v13, v12
        v_mul_f32 v{30+qt}, v14, v12
        """)
    f1("s_waitcnt vmcnt(0)")
    f1("\n".join(k.store_o(S_TMP2, 4 << 17, "", True)))
    a("K2_comb:"); a(f1.text())
    a("K2_fin:")
    ST(3)
    if stamps:
        a("s_waitcnt vmcnt(0)"); ST(4)
    a("K2_end:\ns_endpgm")
    a("K2_ntail:"); E(ny0); E(ny1)
    g = Asm()
    g("s_barrier")
    g("\n".join(dma_lines("V", VSL[0])))
    g("\n".join(k.lsum()))
    part_addr(g)
    g(f"""
    v_rcp_f32 v28, v{V_LS}
    v_rcp_f32 v29, v{V_LS+1}
    v_mov_b32 v8, v{V_NM}
    v_mov_b32 v9, v{V_LS}
    v_mov_b32 v10, v{V_NM+4}
    v_mov_b32 v11, v{V_LS+1}
    buffer_store_dwordx4 v[8:11], v{V_L}, s[{S_WS}:{S_WS+3}], s{S_PART} offen sc1
    """)
    g("\n".join(k.store_o(S_QN, 8192, " sc1", False)))
    g(f"s_mov_b32 s{S_MODE}, 3\ns_mov_b32 s{S_QB}, s{S_I}\ns_mov_b32 s{S_CNT}, s{S_I}\ns_nop 0")
    a(g.text()); a("s_branch K2_item")
    for s in k.stubs: a(s)
    for par in (0, 1): a("\n".join(k.slow(par)))
    L = lambda p: [l for b in p for l in b.lines()]
    for p in paths: check_temps(L(p))
    check_trace(head + e.lines + L(paths[0]) + f.lines + f0.lines, "K2a")
    check_trace(head + e.lines + L(paths[0]) + f.lines + f1.lines, "K2b")
    check_trace(head + e.lines + L(paths[1]) + g.lines + e.lines + L(paths[2]) + f.lines + f0.lines, "K2c")
    check_trace(head + e.lines + L(paths[1]) + g.lines + e.lines + L(paths[0]) + f.lines + f0.lines, "K2d")
    check_trace(head + e.lines + L([p0f, x1]) + k.slow(0) + L([y0, x0]) + k.slow(1) + L([y1]), "K2s")
    return a.text()

if __name__ == "__main__":
    t = gen_k2(True)
    open("k2only.s", "w").write(file_text([(KN, t, 256, 256, 131072, 512, 256)]))
```

```python
from common import *

def gen_oproj(a, ST):
    S_WS, S_WO, S_OUT = 4, 8, 12
    S_W, S_RB, S_CB, S_T, S_C, S_W0, S_W1, S_M = 16, 17, 18, 19, 20, 21, 22, 23
    V_CQ, V_WD, V_WB = 4, 8, 12
    ACC = lambda u, q: 32 + (u*4 + q)*4
    CF = lambda ring, q, s: ((ring*4 + q)*2 + s)*4
    WF = lambda buf, u, s: 128 + ((buf*4 + u)*2 + s)*4
    n0 = len(a.lines)
    a(f"""
    s_and_b32 s{S_RB}, s2, 7
    s_lshl_b32 s{S_RB}, s{S_RB}, 2
    s_bfe_u32 s{S_T}, s2, 0x20003
    s_add_u32 s{S_RB}, s{S_RB}, s{S_T}
    s_lshr_b32 s{S_CB}, s2, 5
    v_and_b32 v1, 63, v0
    v_lshlrev_b32 v{V_CQ}, 4, v1
    v_add_u32 v{V_CQ+1}, {1 << 17}, v{V_CQ}
    v_add_u32 v{V_CQ+2}, {2 << 17}, v{V_CQ}
    v_add_u32 v{V_CQ+3}, {3 << 17}, v{V_CQ}
    v_lshrrev_b32 v2, 3, v1
    v_and_b32 v3, 6, v2
    v_and_b32 v16, 7, v1
    v_xor_b32 v3, v3, v16
    v_lshlrev_b32 v3, 4, v3
    v_mul_u32_u24 v2, 896, v2
    v_add_u32 v{V_WD}, v2, v3
    v_add_u32 v{V_WD+1}, {8*896 - 1024}, v{V_WD}
    v_add_u32 v{V_WD+2}, {2*(8*896 - 1024)}, v{V_WD}
    v_add_u32 v{V_WD+3}, {3*(8*896 - 1024)}, v{V_WD}
    v_lshrrev_b32 v2, 2, v1
    v_bfe_u32 v3, v1, 3, 2
    v_lshlrev_b32 v3, 5, v3
    v_lshl_add_u32 v2, v2, 7, v3
    v_and_b32 v3, 3, v1
    v_lshl_add_u32 v2, v3, 3, v2
    s_lshl_b32 s{S_M}, s{S_W}, 15
    v_add_u32 v{V_WB}, s{S_M}, v2
    v_xor_b32 v{V_WB+1}, 32, v{V_WB}
    v_xor_b32 v{V_WB+2}, 64, v{V_WB}
    v_xor_b32 v{V_WB+3}, 96, v{V_WB}
    s_lshl_b32 s{S_C}, s{S_RB}, 19
    s_add_u32 s{S_C}, s{S_C}, s{S_M}
    s_add_u32 s{S_C}, s{S_C}, {WS_CTX}
    s_mul_i32 s{S_W0}, s{S_W}, {1024*896}
    s_lshl_b32 s{S_T}, s{S_CB}, 7
    s_add_u32 s{S_W0}, s{S_W0}, s{S_T}
    s_add_u32 s{S_W1}, s{S_W0}, {32*896}
    """)
    def loads(b):
        L = []
        for gq in range(2):
            L.append(f"s_add_u32 m0, s{S_M}, {(b & 3)*8192 + gq*4096}")
            L.append(f"buffer_load_dwordx4 {ar(CF(b & 3, 2*gq, 0), 4)}, v{V_CQ+2*gq}, s[{S_WS}:{S_WS+3}], s{S_C} offen")
            for j in range(4):
                L.append(f"buffer_load_dwordx4 v{V_WD+j}, s[{S_WO}:{S_WO+3}], s{S_W0+gq} offen offset:{j*1024} lds")
            L.append(f"s_add_u32 s{S_W0+gq}, s{S_W0+gq}, {64*896}")
            L.append(f"buffer_load_dwordx4 {ar(CF(b & 3, 2*gq, 1), 4)}, v{V_CQ+2*gq}, s[{S_WS}:{S_WS+3}], s{S_C} offen offset:1024")
            for s in range(2):
                L.append(f"buffer_load_dwordx4 {ar(CF(b & 3, 2*gq+1, s), 4)}, v{V_CQ+2*gq+1}, s[{S_WS}:{S_WS+3}], s{S_C} offen offset:{s*1024}")
        L.append(f"s_add_u32 s{S_C}, s{S_C}, 2048")
        return L
    def rdW(b):
        return [f"ds_read_b64_tr_b16 {ar(WF(b & 1, u, s) + 2*jj, 2)}, v{V_WB+u} offset:{(b & 3)*8192 + (32*s + 16*jj)*128}"
                for u in range(4) for s in range(2) for jj in range(2)]
    for b in range(3): a("\n".join(loads(b)))
    a("s_waitcnt vmcnt(32)")
    a("\n".join(rdW(0)))
    bodies = []
    NB = 16
    for b in range(NB):
        ms = []
        for u in range(4):
            for q in range(4):
                for s in range(2):
                    d = vr(ACC(u, q), 4)
                    ms.append(f"v_mfma_f32_16x16x32_bf16 {d}, {ar(WF(b & 1, u, s), 4)}, {ar(CF(b & 3, q, s), 4)}, {'0' if b == 0 and s == 0 else d}")
        bd = Body(ms)
        if b == 0: bd.pre.append("s_waitcnt lgkmcnt(0)")
        g = 0
        if b + 3 < NB:
            for e in loads(b + 3):
                if e.startswith("s_"): g = bd.put(g, e)
                else:
                    bd.put(g, e); g += 1
        if b + 1 < NB:
            later = min(NB - 1, b + 3) - (b + 1)
            bd.put(15, f"s_waitcnt vmcnt({16*later - (1 if b + 3 < NB else 0)})")
            for i, t in enumerate(rdW(b + 1)): bd.put(16 + i, t)
        bodies.append(bd)
    insert_lgkm(bodies)
    for bd in bodies: a("\n".join(bd.lines()))
    ST(1)
    a(f"""
    s_barrier
    s_lshl_b32 s{S_T}, s{S_W}, 14
    v_add_u32 v2, s{S_T}, v{V_CQ}
    s_lshl_b32 s{S_T}, s{S_W}, 12
    v_add_u32 v3, s{S_T}, v{V_CQ}
    s_nop 3
    """)
    for q in range(4):
        for u in range(4): a(f"ds_write_b128 v2, {vr(ACC(u, q), 4)} offset:{q*4096 + u*1024}")
    a("s_waitcnt lgkmcnt(0)\ns_barrier")
    for u in range(4):
        for sw in range(4): a(f"ds_read_b128 {vr(ACC(u, sw), 4)}, v3 offset:{sw*16384 + u*1024}")
    a(f"""
    v_and_b32 v2, 15, v1
    v_mul_u32_u24 v2, 1792, v2
    v_lshrrev_b32 v3, 4, v1
    v_lshl_add_u32 v2, v3, 3, v2
    s_lshl_b32 s{S_T}, s{S_RB}, 2
    s_add_u32 s{S_T}, s{S_T}, s{S_W}
    s_mul_i32 s{S_T}, s{S_T}, {16*1792}
    s_lshl_b32 s{S_C}, s{S_CB}, 7
    s_add_u32 s{S_T}, s{S_T}, s{S_C}
    """)
    for u in range(4):
        a(f"s_waitcnt lgkmcnt({12 - 4*u})")
        r = ACC(u, 0)
        for i in range(4):
            a(f"v_add_f32 v{r+i}, v{r+i}, v{r+4+i}\nv_add_f32 v{r+8+i}, v{r+8+i}, v{r+12+i}")
        for i in range(4): a(f"v_add_f32 v{r+i}, v{r+i}, v{r+8+i}")
        a(f"v_cvt_pk_bf16_f32 v{r}, v{r}, v{r+1}\nv_cvt_pk_bf16_f32 v{r+1}, v{r+2}, v{r+3}")
        a(f"buffer_store_dwordx2 {vr(r, 2)}, v2, s[{S_OUT}:{S_OUT+3}], s{S_T} offen offset:{896 + u*32}")
    return a.lines[n0:]

def gen_conv(a, ST):
    S_WS, S_H, S_OUT, S_Q = 4, 8, 12, 24
    S_W, S_T, S_U0, S_U1, S_HO, S_M, S_MH, S_COL = 16, 17, 18, 19, 20, 21, 22, 23
    S_D = 40
    V_L, V_A, V_B, V_XW, V_XR, V_KV, V_O = 2, 3, 4, 5, 6, 7, 8
    ACC = lambda t: 32 + 4*t
    QR = lambda e: 64 + 4*e
    YA = lambda t: 128 + 4*t
    HOLD = 160
    KV = lambda par, t: 176 + par*8 + 2*t
    TM = 208
    AF = lambda buf, x: (buf*16 + x)*4
    BF = lambda buf, x: (buf*16 + 8 + x)*4
    SET = 21248; XCH = 84992
    n0 = len(a.lines)
    a(f"""
    s_and_b32 s{S_T}, s2, 7
    s_cmp_eq_u32 s{S_T}, 7
    s_cbranch_scc1 K3_end
    s_lshl_b32 s{S_T}, s{S_T}, 2
    s_bfe_u32 s{S_COL}, s2, 0x20003
    s_add_u32 s{S_COL}, s{S_COL}, s{S_T}
    s_lshl_b32 s{S_COL}, s{S_COL}, 1
    s_lshr_b32 s{S_T}, s{S_W}, 1
    s_add_u32 s{S_COL}, s{S_COL}, s{S_T}
    s_lshl_b32 s{S_COL}, s{S_COL}, 3
    s_lshl_b32 s48, s{S_COL}, 1
    s_add_u32 s50, s74, s48
    s_addc_u32 s51, s75, 0
    s_load_dwordx4 s[36:39], s[50:51], 0
    s_mul_i32 s{S_M}, s{S_T}, {2*SET}
    s_and_b32 s49, s{S_W}, 1                   ; hf
    s_mul_i32 s{S_U0}, s{S_COL}, {U_STRIDE}
    s_lshl_b32 s{S_T}, s49, 2
    s_sub_u32 s{S_U0}, s{S_U0}, s{S_T}
    s_add_u32 s{S_U0}, s{S_U0}, {WS_U + 128}
    s_sub_u32 s{S_U1}, s{S_U0}, 2
    s_lshl_b32 s{S_HO}, s{S_COL}, 12
    s_lshl_b32 s{S_T}, s49, 11
    s_add_u32 s{S_HO}, s{S_HO}, s{S_T}
    s_add_u32 s{S_MH}, s{S_M}, s{S_T}
    s_add_u32 s{S_MH}, s{S_MH}, {16640 + 512}
    v_and_b32 v1, 63, v0
    v_lshlrev_b32 v{V_L}, 4, v1
    v_and_b32 v10, 15, v1
    v_lshrrev_b32 v11, 4, v1
    ; A base
    v_lshrrev_b32 v12, 2, v10
    v_mul_u32_u24 v12, 4160, v12
    v_and_b32 v13, 3, v1
    v_lshl_add_u32 v12, v13, 3, v12
    v_lshlrev_b32 v13, 4, v11
    v_sub_u32 v12, v12, v13
    s_lshl_b32 s{S_T}, s49, 8
    s_add_u32 s52, s{S_M}, s{S_T}
    s_add_u32 s52, s52, {64 + 32 - 8}
    v_add_u32 v{V_A}, s52, v12
    ; B base
    v_lshl_add_u32 v12, v10, 5, v13
    s_sub_u32 s52, s{S_M}, s{S_T}
    s_add_u32 s52, s52, {16640 + 512 - 32 - 192}
    v_add_u32 v{V_B}, s52, v12
    v_lshlrev_b32 v12, 5, v10
    v_lshl_add_u32 v12, v11, 3, v12
    s_lshl_b32 s52, s49, 11
    s_add_u32 s52, s52, s{S_M}
    s_add_u32 s52, s52, 64
    v_add_u32 v{V_KV}, s52, v12
    s_lshl_b32 s52, s{S_W}, 13
    s_add_u32 s52, s52, {XCH}
    v_add_u32 v{V_XW}, s52, v{V_L}
    s_lshl_b32 s53, s49, 12
    s_sub_u32 s52, s52, s53
    v_add_u32 v{V_XR}, s52, v{V_L}
    v_lshlrev_b32 v12, 4, v10
    v_lshl_add_u32 v12, v11, 2, v12
    s_lshl_b32 s52, s49, 10
    v_add_u32 v12, s52, v12
    v_mul_u32_u24 v{V_O}, 896, v12
    s_mul_i32 s{S_T}, s49, 8320
    s_add_u32 s{S_M}, s{S_M}, s{S_T}
    s_add_u32 s{S_M}, s{S_M}, 64
    """)
    def dma(r):
        bo = (r & 1)*SET
        L = [f"s_add_u32 m0, s{S_MH}, {bo}"]
        L += [f"buffer_load_dwordx4 v{V_L}, s[{S_H}:{S_H+3}], s{S_HO} offen offset:{j*1024} lds ; @w:S{r&1}" for j in range(2)]
        L += [f"s_add_u32 m0, s{S_M}, {bo}"]
        L += [f"buffer_load_dwordx4 v{V_L}, s[{S_WS}:{S_WS+3}], s{S_U0} offen offset:{j*1024} lds ; @w:S{r&1}" for j in range(4)]
        L += [f"s_add_u32 m0, s{S_M}, {bo + 4160}"]
        L += [f"buffer_load_dwordx4 v{V_L}, s[{S_WS}:{S_WS+3}], s{S_U1} offen offset:{j*1024} lds ; @w:S{r&1}" for j in range(4)]
        L += [f"s_add_u32 s{S_HO}, s{S_HO}, 4096", f"s_add_u32 s{S_U0}, s{S_U0}, {U_STRIDE}", f"s_add_u32 s{S_U1}, s{S_U1}, {U_STRIDE}"]
        return L
    def plain(L):
        for e in L:
            a(e)
            if "m0," in e: a("s_nop 0")
    plain(dma(0)); plain(dma(1))
    a(f"""
    v_mov_b32 v12, 0
    v_mov_b32 v13, 0
    s_mul_i32 s52, s{S_W}, {SET}
    v_lshl_add_u32 v14, v1, 3, s52
    ds_write_b64 v14, v[12:13] offset:16640
    v_mul_u32_u24 v14, 4160, v11
    v_lshl_add_u32 v14, v10, 2, v14
    v_add_u32 v14, s52, v14
    ds_write_b32 v14, v12
    """)
    for tl in range(4):
        a(f"s_add_u32 s52, s48, {tl*256*896}")
        for x in range(4):
            a(f"buffer_load_dwordx4 {vr(QR(tl*4 + x), 4)}, v{V_O}, s[{S_Q}:{S_Q+3}], s52 offen offset:{x*896}")
    a(f"v_lshlrev_b32 v{V_O}, 1, v{V_O}")
    a("s_waitcnt lgkmcnt(0)")
    for i in range(4):
        a(f"s_lshl_b32 s{S_D+2*i}, s{36+i}, 16\ns_and_b32 s{S_D+2*i+1}, s{36+i}, 0xffff0000")
    def rdf(r, p):
        bo = (r & 1)*SET; buf = p & 1
        L = []
        for x in range(8):
            L.append(f"ds_read_b64_tr_b16 {ar(AF(buf, x), 2)}, v{V_A} offset:{bo + 512*x + 64*p + 8} ; @r:S{r&1}")
            L.append(f"ds_read_b64_tr_b16 {ar(AF(buf, x) + 2, 2)}, v{V_A} offset:{bo + 512*x + 64*p} ; @r:S{r&1}")
            L.append(f"ds_read_b128 {ar(BF(buf, x), 4)}, v{V_B} offset:{bo + 512*x + 64*(3 - p)} ; @r:S{r&1}")
        return L
    def xw(r, t): return f"ds_write_b128 v{V_XW}, {vr(ACC(t), 4)} offset:{(r & 1)*32768 + t*1024} ; @w:X{r&1}"
    def xr(r): return [f"ds_read_b128 {vr(YA(4*h + t), 4)}, v{V_XR} offset:{(r & 1)*32768 + h*8192 + t*1024} ; @r:X{r&1}" for t in range(4) for h in range(2)]
    def kvr(r): return [f"ds_read_b64 {vr(KV(r & 3, t), 2)}, v{V_KV} offset:{(r & 1)*SET + 512*t} ; @r:S{r&1}" for t in range(4)]
    def fin(r):
        L = []
        for t in range(4):
            for x in range(4):
                e = t*4 + x; y = YA(t) + x; tm = TM + (e & 1)*2
                kv = KV(r & 3, t) + (x >> 1); q = QR(e) + (r >> 1)
                L.append(f"v_add_f32 v{y}, v{y}, v{y+16}")
                L.append(f"v_lshlrev_b32 v{tm}, 16, v{kv}" if x % 2 == 0 else f"v_and_b32 v{tm}, 0xffff0000, v{kv}")
                L.append(f"v_lshlrev_b32 v{tm+1}, 16, v{q}" if r % 2 == 0 else f"v_and_b32 v{tm+1}, 0xffff0000, v{q}")
                L.append(f"v_fmac_f32 v{y}, s{S_D + r}, v{tm}")
                if r % 2 == 0: L.append(f"v_mul_f32 v{HOLD+e}, v{y}, v{tm+1}")
                else:
                    L.append(f"v_mul_f32 v{y}, v{y}, v{tm+1}")
                    L.append(f"v_cvt_pk_bf16_f32 v{q}, v{HOLD+e}, v{y}")
        return L
    a("s_waitcnt vmcnt(26)\ns_barrier")
    a("\n".join(rdf(0, 0)))
    bodies = []
    carry = []
    for r in range(8):
        ms = []
        for p in range(4):
            for t in range(8):
                for x in range(t + 1):
                    d = vr(ACC(t), 4)
                    ms.append(f"v_mfma_f32_16x16x32_bf16 {d}, {ar(AF(p & 1, x), 4)}, {ar(BF(p & 1, t - x), 4)}, {'0' if p == 0 and x == 0 else d}")
        b = Body(ms)
        if r == 0: b.pre.append("s_waitcnt lgkmcnt(0)")
        if r > 0: b.put(7, xw(r - 1, 7))
        for p in range(3):
            g = 36*p
            for i, t in enumerate(rdf(r, p + 1)): g = b.place(g, t) + 1 + (i % 4 == 3)
            if p == 2:
                for t in kvr(r): g = b.place(g, t) + 1
        b.put(107, f"s_waitcnt vmcnt(0) lgkmcnt(0)"); b.put(107, "s_barrier")
        g = 108
        if r < 7:
            for i, t in enumerate(rdf(r + 1, 0)): g = b.place(g, t) + 1
        for t in range(7):
            end = 108 + (t + 1)*(t + 2)//2 - 1
            b.put(min(143, end + 8), xw(r, t))
        if r >= 2:
            left, g2 = place_stream(b, xr(r - 2), 0, 106); assert not left
        if 1 <= r < 7:
            left, _ = place_stream(b, dma(r + 1), 0, 106); assert not left
        if r >= 2:
            left, _ = place_stream(b, fin(r - 2), g2 + 1, 143); assert not left, len(left)
        bodies.append(b)
    insert_lgkm(bodies)
    print("conv overflow", [b.over() for b in bodies])
    for b in bodies: a("\n".join(b.lines()))
    ST(1)
    t = Asm()
    t("\n".join(xr(6)))
    t(xw(7, 7))
    t("s_waitcnt lgkmcnt(1)")
    t("\n".join(fin(6)))
    t("s_waitcnt lgkmcnt(0)\ns_barrier")
    t("\n".join(xr(7)))
    t("s_waitcnt lgkmcnt(0)")
    f7 = fin(7)
    for tl in range(4):
        t("\n".join(f7[tl*24:(tl+1)*24]))
        for xx in range(2):
            t(f"s_add_u32 s52, s48, {(tl*256 + 2*xx)*1792}")
            for x in range(2):
                t(f"buffer_store_dwordx4 {vr(QR(tl*4 + 2*xx + x), 4)}, v{V_O}, s[{S_OUT}:{S_OUT+3}], s52 offen offset:{x*1792}")
    a(t.text())
    return a.lines[n0:]

def gen_k3(stamps=False):
    a = Asm()
    ST = (lambda i: stamp(a, i, 2, 4, vt=28, st=84)) if stamps else (lambda i: None)
    a(f"""
    s_cmp_ge_u32 s2, 256
    s_cbranch_scc1 K3_end
    s_load_dwordx4 s[64:67], s[0:1], {B_WO}
    s_load_dwordx2 s[68:69], s[0:1], {D_WS}
    s_load_dwordx2 s[70:71], s[0:1], {A_Q}
    s_load_dwordx4 s[72:75], s[0:1], {A_SSMK}
    v_lshrrev_b32 v1, 6, v0
    s_nop 0
    v_readfirstlane_b32 s16, v1
    s_waitcnt lgkmcnt(0)
    """)
    srd(a, 4, 68, 0x10000000); srd(a, 12, 66, 2048*1792)
    ST(0)
    head = list(a.lines)
    a("s_cmp_ge_u32 s2, 224\ns_cbranch_scc1 K3_conv")
    srd(a, 8, 64, 3670016)
    t1 = gen_oproj(a, ST)
    a("s_branch K3_fin")
    a("K3_conv:")
    srd(a, 8, 72, 1835008); srd(a, 24, 70, 1835008)
    t2 = gen_conv(a, ST)
    a("K3_fin:")
    ST(2)
    if stamps:
        a("s_waitcnt vmcnt(0)"); ST(3)
    a("K3_end:\ns_endpgm")
    check_trace(head + t1, "K3o"); check_trace(head + t2, "K3c")
    return a.text()

def prep_loads(a, SK, SV, SS, vb):
    K, Vv, SH, AD = vb, vb + 11, vb + 20, vb + 24
    a(f"""
    s_mul_hi_u32 s60, s2, {(1 << 32)//7 + 1}
    s_mul_i32 s61, s60, 7
    s_sub_u32 s61, s2, s61
    v_and_b32 v{AD}, 31, v0
    v_lshrrev_b32 v{AD+1}, 5, v0
    s_lshl_b32 s62, s60, 3
    v_add_u32 v{AD+1}, s62, v{AD+1}
    s_lshl_b32 s62, s61, 5
    v_add_u32 v{AD}, s62, v{AD}
    v_mul_u32_u24 v{AD+2}, {8*896}, v{AD+1}
    v_lshl_add_u32 v{AD+2}, v{AD}, 2, v{AD+2}
    v_lshlrev_b32 v{AD+3}, 4, v{AD}
    buffer_load_dwordx4 {vr(SH, 4)}, v{AD+3}, s[{SS}:{SS+3}], 0 offen
    """)
    for j in range(3):
        a(f"v_subrev_u32 v{AD+3}, {(3 - j)*896}, v{AD+2}\nbuffer_load_dword v{K+j}, v{AD+3}, s[{SK}:{SK+3}], 0 offen")
    a(f"v_add_u32 v{AD+3}, {4*896}, v{AD+2}")
    for j in range(8):
        ad = AD + 2 + (j >> 2)
        a(f"buffer_load_dword v{K+3+j}, v{ad}, s[{SK}:{SK+3}], 0 offen offset:{(j & 3)*896}")
        a(f"buffer_load_dword v{Vv+j}, v{ad}, s[{SV}:{SV+3}], 0 offen offset:{(j & 3)*896}")
def prep_compute(a, SO, vb, tb):
    K, Vv, SH, AD = vb, vb + 11, vb + 20, vb + 24
    un = lambda d, s, hi: a(f"v_and_b32 v{d}, 0xffff0000, v{s}" if hi else f"v_lshlrev_b32 v{d}, 16, v{s}")
    a(f"""
    v_mul_u32_u24 v{AD+2}, {2*U_STRIDE}, v{AD}
    v_lshl_add_u32 v{AD+2}, v{AD+1}, 4, v{AD+2}
    s_mov_b32 s62, {WS_U + 128}
    s_mov_b32 s63, {WS_U + 128 + U_STRIDE}
    """)
    for c in range(2):
        kk, ww, rr = tb, tb + 12, tb + 16 + 12*c
        for j in range(11): un(kk + j, K + j, c)
        for j in range(4): un(ww + j, SH + 2*c + (j >> 1), j & 1)
        for s in range(8):
            a(f"v_mul_f32 v{rr+s}, v{kk+s}, v{ww+3}")
            for j in (2, 1, 0): a(f"v_fmac_f32 v{rr+s}, v{kk+3+s-j}, v{ww+j}")
            un(tb + 11, Vv + s, c)
            a(f"v_mul_f32 v{rr+s}, v{rr+s}, v{tb+11}")
        for i in range(4): a(f"v_cvt_pk_bf16_f32 v{rr+8+i}, v{rr+2*i}, v{rr+2*i+1}")
        a(f"buffer_store_dwordx4 {vr(rr+8, 4)}, v{AD+2}, s[{SO}:{SO+3}], s{62+c} offen")
    l = a.label("Lpz")
    a(f"""
    v_cmp_eq_u32 vcc, 0, v{AD+1}
    s_and_saveexec_b64 s[60:61], vcc
    s_cbranch_execz {l}
    v_mov_b32 v{tb}, 0
    v_mov_b32 v{tb+1}, 0
    s_sub_u32 s62, s62, 8
    s_sub_u32 s63, s63, 8
    buffer_store_dwordx2 {vr(tb, 2)}, v{AD+2}, s[{SO}:{SO+3}], s62 offen
    buffer_store_dwordx2 {vr(tb, 2)}, v{AD+2}, s[{SO}:{SO+3}], s63 offen
    {l}:
    s_mov_b64 exec, s[60:61]
    """)

if __name__ == "__main__":
    t = gen_k3(True)
    open("k3only.s", "w").write(file_text([(KN, t, 256, 256, 150528, 512, 256)]))
```

```python
import re

_REG = re.compile(r"^-?(?:abs\(|\|)?([vas])(?:(\d+)|\[(\d+):(\d+)\])(?:\)|\|)?$")
TRANS = ("v_exp_f32", "v_log_f32", "v_rcp_f32", "v_rsq_f32", "v_sqrt_f32", "v_sin_f32", "v_cos_f32")

def regs_of(op):
    op = op.strip()
    m = _REG.match(op)
    if m:
        k = m.group(1)
        if m.group(2) is not None:
            return [(k, int(m.group(2)))]
        return [(k, i) for i in range(int(m.group(3)), int(m.group(4)) + 1)]
    if op in ("vcc", "vcc_lo", "vcc_hi"): return [("x", "vcc")]
    if op in ("exec", "exec_lo", "exec_hi"): return [("x", "exec")]
    if op == "m0": return [("x", "m0")]
    return []

class Ins:
    __slots__ = ("text", "mn", "kind", "rd", "wr", "ops", "tagr", "tagw", "c", "d", "ab", "nop")
    def __init__(self, text):
        self.text = text
        body, _, com = text.partition(";")
        body = body.strip()
        self.tagr = re.findall(r"@r:(\w+)", com); self.tagw = re.findall(r"@w:(\w+)", com)
        self.rd = []; self.wr = []; self.c = self.d = self.ab = None; self.nop = 1
        if not body or body.endswith(":") or body.startswith("."):
            self.mn = ""; self.kind = "none"; self.ops = []; self.nop = 0; return
        mn, _, rest = body.partition(" ")
        self.mn = mn
        ops = [o.strip() for o in rest.split(",")] if rest.strip() else []
        if ops:
            last = ops[-1].split()
            mods = last[1:]; ops[-1] = last[0]
        else:
            mods = []
        self.ops = ops
        R = [regs_of(o) for o in ops]
        flat = lambda l: [r for x in l for r in x]
        if mn.startswith("v_mfma"):
            self.kind = "mfma"; self.wr = R[0]; self.rd = flat(R[1:]); self.d = R[0]; self.c = R[3]; self.ab = R[1] + R[2]
        elif mn.startswith("ds_read") or mn.startswith("ds_bpermute") or mn.startswith("ds_swizzle"):
            self.kind = "dsr"; self.wr = R[0]; self.rd = flat(R[1:])
        elif mn.startswith("ds_"):
            self.kind = "dsw"; self.rd = flat(R)
        elif mn.startswith("buffer_load") and "lds" in mods:
            self.kind = "dma"; self.rd = flat(R) + [("x", "m0")]
        elif mn.startswith("buffer_load") or mn.startswith("global_load"):
            self.kind = "vld"; self.wr = R[0]; self.rd = flat(R[1:])
        elif mn.startswith("buffer_store") or mn.startswith("global_store"):
            self.kind = "vst"; self.rd = flat(R)
        elif mn.startswith("buffer_atomic") or mn.startswith("global_atomic"):
            self.kind = "vst"; self.rd = flat(R)
            if "sc0" in mods: self.kind = "vld"; self.wr = R[0]
        elif mn in ("buffer_inv", "buffer_wbl2"):
            self.kind = "vst"
        elif mn.startswith("s_load") or mn in ("s_memtime", "s_memrealtime"):
            self.kind = "smem"; self.wr = R[0]; self.rd = flat(R[1:])
        elif mn == "s_waitcnt":
            self.kind = "wait"
        elif mn == "s_barrier":
            self.kind = "bar"
        elif mn == "s_nop":
            self.kind = "nop"; self.nop = int(ops[0], 0) + 1
        elif mn.startswith("s_cbranch") or mn in ("s_branch", "s_endpgm", "s_sleep", "s_setprio", "s_call_b64", "s_setpc_b64"):
            self.kind = "ctl"
            if "vcc" in mn: self.rd = [("x", "vcc")]
        elif mn.startswith("s_cmp") or mn.startswith("s_bitcmp"):
            self.kind = "salu"; self.rd = flat(R)
        elif mn.startswith("s_"):
            self.kind = "salu"; self.wr = R[0]; self.rd = flat(R[1:])
            if "saveexec" in mn: self.wr = self.wr + [("x", "exec")]
        elif mn.startswith("v_permlane") and "swap" in mn:
            self.kind = "valu"; self.wr = flat(R); self.rd = flat(R)
        elif mn.startswith("v_"):
            self.kind = "valu"; self.wr = R[0]; self.rd = flat(R[1:])
            if mn.startswith(("v_fmac", "v_writelane", "v_dot2c")) or "dpp" in mn or "sdwa" in mn: self.rd = self.rd + R[0]
            if mn.startswith(("v_add_co", "v_sub_co", "v_addc_co", "v_subb_co")): self.wr = R[0] + R[1]; self.rd = flat(R[2:])
        else:
            raise ValueError("unparsed: " + text)
    def is_trans(self): return self.mn.startswith(TRANS)

def parse(lines):
    return [Ins(l) for l in lines]

def wait_counts(text):
    vm = re.search(r"vmcnt\((\d+)\)", text); lg = re.search(r"lgkmcnt\((\d+)\)", text)
    return (int(vm.group(1)) if vm else None, int(lg.group(1)) if lg else None)

def check_trace(lines, name="", verbose=True):
    ins = parse(lines)
    probs = []
    pos = 0
    lastw = {}
    lastc = {}
    lastst = {}
    lg = []; vm = []
    pend = {}
    wstate = {}
    rstate = {}
    def P(i, msg): probs.append(f"{name}[{i}] {ins[i].text.strip()} :: {msg}")
    for i, x in enumerate(ins):
        if x.kind == "none": continue
        if x.kind == "wait":
            v, l = wait_counts(x.text)
            if v is not None:
                while len(vm) > v:
                    e = vm.pop(0); e["done"] = True
            if l is not None:
                if any(e["i"].kind == "smem" for e in lg) and l != 0:
                    pass
                else:
                    while len(lg) > l:
                        e = lg.pop(0); e["done"] = True
        if x.kind == "bar":
            for st in (wstate, rstate):
                for t in st:
                    st[t] = [e for e in st[t] if not e["done"]]
        for r in x.rd + x.wr:
            e = pend.get(r)
            if e and not e["done"]:
                if r in x.wr and r not in x.rd and x.kind == e["i"].kind:
                    continue
                P(i, f"{r} has outstanding load: {e['i'].text.strip()}")
                break
        def dist(p): return pos - p - 1
        for r in x.rd:
            w = lastw.get(r)
            if not w: continue
            p, k, wi = w
            need = 0
            if k == "mfma":
                if x.kind == "mfma":
                    if r in x.ab: need = 8 if "16x16" in wi.mn else 12
                    elif x.c == wi.d and x.mn == wi.mn: need = 0
                    else: need = 6 if "16x16" in wi.mn else 10
                else: need = 8 if "16x16" in wi.mn else 12
            elif k == "valu":
                if r[0] in "va":
                    if x.kind == "mfma": need = 2
                    elif x.mn.startswith("v_permlane") or "dpp" in x.mn: need = 2
                    elif x.mn.startswith(("v_readlane", "v_readfirstlane")): need = 1
                    elif wi.is_trans() and x.kind == "valu" and not x.is_trans(): need = 1
                    elif wi.is_trans(): need = 1
                else:
                    if x.kind == "valu": need = 2
                    elif x.kind in ("vld", "vst", "dma"): need = 5
            elif k == "salu":
                if r == ("x", "m0") and x.kind == "dma": need = 1
            if dist(p) < need: P(i, f"RAW hazard on {r}: dist {dist(p)} < {need} after {wi.text.strip()}"); break
        for r in x.wr:
            w = lastw.get(r)
            if w and w[1] == "mfma" and x.kind != "mfma":
                need = 8 if "16x16" in w[2].mn else 12
                if dist(w[0]) < need: P(i, f"WAW hazard on {r} after {w[2].text.strip()}"); break
            if w and w[1] == "mfma" and x.kind == "mfma" and not (x.c == w[2].d):
                pass
            if x.kind == "valu":
                p = lastc.get(r)
                if p is not None and dist(p[0]) < p[1]: P(i, f"WAR on SrcC {r}"); break
            if x.kind != "mfma":
                p = lastst.get(r)
                if p is not None and dist(p) < 2: P(i, f"WAR on store data {r}"); break
        for t in x.tagr:
            if wstate.get(t): P(i, f"LDS RAW: slot {t} has unfenced writes")
        for t in x.tagw:
            if rstate.get(t): P(i, f"LDS WAR: slot {t} has unfenced reads")
        e = None
        if x.kind in ("dsr", "dsw", "smem"):
            e = {"i": x, "done": False}; lg.append(e)
            if x.kind == "smem" and len(x.wr) > 1: lg.append({"i": x, "done": False})
        elif x.kind in ("vld", "vst", "dma"):
            e = {"i": x, "done": False}; vm.append(e)
            if len(vm) > 63: P(i, "more than 63 vm outstanding (counter saturates/stalls)")
        if e is not None:
            for r in x.wr: pend[r] = e
            for t in x.tagr: rstate.setdefault(t, []).append(e)
            for t in x.tagw: wstate.setdefault(t, []).append(e)
        for r in x.wr:
            lastw[r] = (pos + x.nop - 1, x.kind, x)
        if x.kind == "mfma":
            for r in x.c: lastc[r] = (pos, 3 if "16x16" in x.mn else 7)
        if x.kind == "vst" and ("x4" in x.mn or "x3" in x.mn):
            for r in regs_of(x.ops[0] if x.mn.startswith("buffer") else x.ops[1]): lastst[r] = pos
        pos += x.nop
    if verbose:
        for p in probs[:40]: print("HAZ", p)
    return probs

def vcost(x):
    if x.kind in ("dma", "vld", "vst"): return 2
    if x.kind == "valu" and x.is_trans(): return 2
    return 1

class Body:
    def __init__(self, mfmas):
        self.m = list(mfmas); n = len(self.m)
        self.S = [[] for _ in range(n)]
        self.V = [[] for _ in range(n)]
        self.pre = []
        self.post = []
    def used(self, g):
        return sum(vcost(x) for x in self.V[g]) + max(0, len(self.S[g]) - 1)
    def fits(self, g, x):
        u = self.used(g)
        if x.kind in ("dsr", "dsw"):
            return u <= 1 and not any(y.kind in ("dsr", "dsw") for y in self.V[g])
        return u + vcost(x) <= 2
    def put(self, g, text):
        x = Ins(text)
        if x.kind in ("salu", "wait", "bar", "nop", "ctl", "none", "smem"):
            self.S[g].append(x)
        elif x.kind in ("dsr", "dsw") and not any(y.kind in ("dsr", "dsw") for y in self.V[g]):
            self.V[g].insert(0, x)
        else:
            self.V[g].append(x)
        return g
    def place(self, g0, text, g1=None):
        x = Ins(text)
        n = len(self.m) if g1 is None else g1 + 1
        for g in range(g0, n):
            if x.kind in ("salu", "wait", "nop"):
                if not self.S[g]: return self.put(g, text)
            elif self.fits(g, x): return self.put(g, text)
        return None
    def lines(self):
        out = list(self.pre)
        for g, m in enumerate(self.m):
            out.append(m)
            out += [x.text for x in self.S[g]] + [x.text for x in self.V[g]]
        return out + list(self.post)
    def over(self):
        return sum(max(0, self.used(g) - 2) for g in range(len(self.m)))

def insert_lgkm(seq, minlat=3):
    for _pass in range(3):
        fifo = []
        nissued = 0
        done_upto = 0
        regid = {}
        hist = []
        changed = False
        def apply_wait(x):
            nonlocal done_upto
            v, l = wait_counts(x.text)
            if l is not None: done_upto = max(done_upto, nissued - l)
        def need(x):
            ids = [regid[r] for r in (x.rd + x.wr) if r in regid and regid[r] >= done_upto]
            if x.kind == "dsr": ids = [regid[r] for r in x.rd if r in regid and regid[r] >= done_upto]
            return max(ids) if ids else None
        def issue(x):
            nonlocal nissued
            if x.kind in ("dsr", "dsw"):
                for r in x.wr: regid[r] = nissued
                nissued += 1
        def add_wait(k, direct=None):
            nonlocal done_upto, changed
            changed = True
            best = None
            for (b, g, ni) in reversed(hist[-6:]):
                if ni <= k: break
                ws = [y for y in b.S[g] if y.kind == "wait"]
                if ws or not b.S[g] or b.used(g) < 2:
                    best = (b, g, ni); break
            if best is None:
                if hist and hist[-1][2] > k: best = hist[-1]
                else:
                    direct(); done_upto = k + 1; return
            b, g, ni = best
            cnt = ni - k - 1
            assert cnt >= 0
            cnt = min(cnt, 15)
            ws = [y for y in b.S[g] if y.kind == "wait"]
            if ws:
                v, l = wait_counts(ws[0].text)
                l = cnt if l is None else min(l, cnt)
                b.S[g][b.S[g].index(ws[0])] = Ins("s_waitcnt " + (f"vmcnt({v}) " if v is not None else "") + f"lgkmcnt({l})")
            else:
                b.S[g].insert(0, Ins(f"s_waitcnt lgkmcnt({cnt})"))
            done_upto = max(done_upto, ni - cnt)
        for b in seq:
            for t in b.pre:
                x = Ins(t)
                if x.kind == "wait": apply_wait(x)
                issue(x)
            for g, m in enumerate(b.m):
                x = Ins(m)
                k = need(x)
                if k is not None:
                    def direct(b=b, g=g, k=k):
                        cnt = min(15, nissued - k - 1)
                        if g > 0: b.V[g-1].append(Ins(f"s_waitcnt lgkmcnt({cnt})"))
                        else: b.pre.append(f"s_waitcnt lgkmcnt({cnt})")
                    add_wait(k, direct)
                hist.append((b, g, nissued))
                for y in list(b.S[g]):
                    if y.kind == "wait": apply_wait(y)
                for y in list(b.V[g]):
                    if y.kind == "wait": apply_wait(y); continue
                    k = need(y)
                    if k is not None:
                        def direct(b=b, g=g, k=k, y=y):
                            b.V[g].insert(b.V[g].index(y), Ins(f"s_waitcnt lgkmcnt({min(15, nissued - k - 1)})"))
                        add_wait(k, direct)
                    issue(y)
            for t in b.post:
                x = Ins(t)
                if x.kind == "wait": apply_wait(x)
                issue(x)
        if not changed: break


def place_stream(b, ops, g0, g1=None, spread=None):
    n = len(b.m) if g1 is None else g1 + 1
    g = g0
    prev = None
    left = []
    placed = []
    for i, op in enumerate(ops):
        mg = 0
        if isinstance(op, tuple): op, mg = op
        g = max(g, mg)
        x = Ins(op)
        if prev is not None:
            pv = prev.kind not in ("salu", "wait", "nop")
            if pv and x.kind in ("salu", "wait", "nop", "dsr", "dsw"): g += 1
            elif not pv and ("x", "m0") in prev.wr and x.kind == "dma": g += 1
            elif prev.is_trans() and set(prev.wr) & set(x.rd): g += 1
        prev = x
        r = b.place(g, op, n - 1) if g < n else None
        if r is None:
            left = ops[i:]; break
        g = r; placed.append(r)
    return left, g
```

```python
import sys
from common import *
from k1 import gen_k1
from k2 import gen_k2
from k3 import gen_k3
def relabel(t, p):
    import re
    return re.sub(r"\b(Lst|Lpz|Lg|Lstub|Lback|L)_(\d+)", lambda m: f"{p}{m.group(1)}_{m.group(2)}", t)
if __name__ == "__main__":
    which = sys.argv[1]; out = sys.argv[2]
    ks = [("p1_kernel", relabel(gen_k1(which == "s1"), "A"), 256, 256, 131072, 512, 256),
          ("p2_kernel", relabel(gen_k2(which == "s2"), "B"), 256, 256, 131072, 512, 256),
          ("p3_kernel", relabel(gen_k3(which == "s3"), "C"), 256, 256, 150528, 512, 256)]
    hdr = "".join(l for l in open("concat_heads__ssm_conv_h3__compressed_kv_cla__prompt.s.ref") if l.startswith(";") and "aunch" not in l and "grid=" not in l)
    open(out, "w").write(file_text(ks, hdr))
```

```python
from mcommon import *

V_LV = 2
V_E = 8
V_NM = 16
V_LS, V_LT = 24, 26
V_T = 28
def S(buf, kt, qt): return 32 + ((buf*4 + kt)*2 + qt)*4
def P(buf, qt, ks): return 96 + ((buf*2 + qt)*2 + ks)*4
def O(dt, qt): return 128 + (dt*2 + qt)*4
def Qf(qt, t): return (qt*8 + t)*4
def R(f): return 64 + (f % 16)*4
S_K, S_KREM, S_KNX, S_KRN = 8, 9, 10, 11
S_V, S_VREM, S_VNX, S_VRN = 12, 13, 14, 15
S_RA = 16
S_M, S_CNT, S_MODE, S_THR, S_QN, S_PART, S_FLAG, S_QB, S_HB = 18, 19, 24, 25, 26, 27, 28, 29, 30
S_TMP, S_TMP2 = S_T, S_T2
S_MASK = 32
KSL = (0, 32768); VSL = (65536, 98304)
V_Z, V_ONE = 5, 6
S_PB, S_PL, S_PM, S_ORB, S_OCB, S_WOB = 76, 77, 78, 79, 80, 81
TPOLL = f"buffer_load_dword v3, off, s[{S_WS}:{S_WS+3}], s{S_OCB} sc1"
ROTM = 0
HS = SC

def rd(f, slot, tag):
    base, off = (V_L, slot) if slot < 65536 else (V_LV, slot - 65536)
    return f"ds_read_b128 {ar(R(f), 4)}, v{base} offset:{off + f*1024}"
def tagof(slot): return {0: "K0", 32768: "K1", 65536: "V0", 98304: "V1", 131072: "EX"}[slot]
OSL = (131072, 98304, 32768, 65536, 0, 131072, 98304)
V_OD, V_OR = 8, 12
S_WOS = 36
def wo_setup():
    return [l.strip() for l in f"""
    v_lshrrev_b32 v28, 7, v{V_L}
    v_and_b32 v29, 6, v28
    v_lshlrev_b32 v29, 4, v29
    v_and_b32 v30, 0x70, v{V_L}
    v_xor_b32 v29, v29, v30
    v_mul_u32_u24 v28, 896, v28
    v_add_u32 v{V_OD}, v28, v29
    v_add_u32 v{V_OD+1}, {8*896 - 1024}, v{V_OD}
    v_add_u32 v{V_OD+2}, {2*(8*896 - 1024)}, v{V_OD}
    v_add_u32 v{V_OD+3}, {3*(8*896 - 1024)}, v{V_OD}
    v_lshrrev_b32 v28, 6, v{V_L}
    v_bfe_u32 v29, v{V_L}, 7, 2
    v_lshlrev_b32 v29, 5, v29
    v_lshl_add_u32 v28, v28, 7, v29
    v_bfe_u32 v29, v{V_L}, 4, 2
    v_lshl_add_u32 v28, v29, 3, v28
    v_add_u32 v{V_OR}, {OSL[0]}, v28
    v_xor_b32 v{V_OR+1}, 32, v{V_OR}
    v_xor_b32 v{V_OR+2}, 64, v{V_OR}
    v_xor_b32 v{V_OR+3}, 96, v{V_OR}
    """.strip().split("\n")], [f"s_mov_b64 s[{S_WOS}:{S_WOS+1}], s[{PTR(B_WO)}:{PTR(B_WO)+1}]", f"s_mov_b32 s{S_WOS+2}, 3670016", f"s_mov_b32 s{S_WOS+3}, 0x20000"]
def wo_dma(n):
    slot = OSL[n]
    pc = lambda j: f"buffer_load_dwordx4 v{V_OD+j}, s[{S_WOS}:{S_WOS+3}], s{S_WOB} offen offset:{j*1024} lds"
    return [f"s_add_u32 m0, s{S_M}, {slot}"] + [pc(j) for j in range(4)] + [f"s_add_u32 s{S_WOB}, s{S_WOB}, {32*896}", f"s_add_u32 m0, s{S_M}, {slot + 4096}"] + \
           [pc(j) for j in range(4)] + [f"s_sub_u32 s{S_WOB}, s{S_WOB}, {32*896 - 128}"]
def wo_rd(n, f):
    kt, t = f >> 3, f & 7; slot = OSL[n]
    return [f"ds_read_b64_tr_b16 {ar(R(f) + 2*jj, 2)}, v{V_OR+kt} offset:{(32*t + 16*jj)*128}" for jj in range(2)]
def wo_bump(n, kt): return f"v_add_u32 v{V_OR+kt}, {(OSL[n+1] - OSL[n]) & 0xffffffff}, v{V_OR+kt}"

def dma_ops(stream, slot):
    s, rem, nx, rn = (S_K, S_KREM, S_KNX, S_KRN) if stream == "K" else (S_V, S_VREM, S_VNX, S_VRN)
    pc = lambda j: f"buffer_load_dwordx4 v{V_L}, s[{S_WS}:{S_WS+3}], s{s} offen offset:{j*1024}{SC} lds"
    return dict(m0=[f"s_add_u32 m0, s{S_M}, {slot}", f"s_add_u32 m0, s{S_M}, {slot + 4096}"],
                p=[pc(j) for j in range(4)] * 2,
                mid=f"s_add_u32 s{s}, s{s}, 4096",
                end=[f"s_add_u32 s{s}, s{s}, 28672", f"s_sub_u32 s{rem}, s{rem}, 1", f"s_cmp_eq_u32 s{rem}, 0",
                     f"s_cselect_b32 s{s}, s{nx}, s{s}", f"s_cselect_b32 s{rem}, s{rn}, s{rem}", f"s_cselect_b32 s{nx}, {INVALID}, s{nx}"])
def put_dma(b, stream, slot, g0, step):
    d = dma_ops(stream, slot)
    g = g0
    for j in range(8):
        if j == 0: b.put(g - 1, d["m0"][0])
        if j == 4:
            b.put(g - step + 1 if step > 1 else g - 1, d["mid"]); b.put(g - 1, d["m0"][1])
        b.put(g, d["p"][j]); g += step
    g = g - step + 1
    for e in d["end"]:
        b.put(g, e); g += 1
    return g
def dma_lines(stream, slot):
    d = dma_ops(stream, slot)
    return [d["m0"][0], "s_nop 0"] + d["p"][:4] + [d["mid"], d["m0"][1], "s_nop 0"] + d["p"][4:] + d["end"]

def softmax_ops(buf, kts, qts, started):
    ex = []; sm = []
    for kt in kts:
        for qt in qts:
            e0 = len(ex)
            t = [V_E + (e0 + r) % 8 for r in range(4)]
            for r in range(4): ex.append(f"v_exp_f32 v{t[r]}, v{S(buf, kt, qt) + r}")
            p = P(buf, qt, kt >> 1) + 2*(kt & 1)
            if qt not in started:
                sm.append((f"v_add_f32 v{V_LT+qt}, v{t[0]}, v{t[1]}", e0 + 1)); started.add(qt)
            else:
                sm.append((f"v_add_f32 v{V_LT+qt}, v{V_LT+qt}, v{t[0]}", e0))
                sm.append((f"v_add_f32 v{V_LT+qt}, v{V_LT+qt}, v{t[1]}", e0 + 1))
            sm.append((f"v_cvt_pk_bf16_f32 v{p}, v{t[0]}, v{t[1]}", e0 + 1))
            sm.append((f"v_add_f32 v{V_LT+qt}, v{V_LT+qt}, v{t[2]}", e0 + 2))
            sm.append((f"v_add_f32 v{V_LT+qt}, v{V_LT+qt}, v{t[3]}", e0 + 3))
            sm.append((f"v_cvt_pk_bf16_f32 v{p+1}, v{t[2]}, v{t[3]}", e0 + 3))
    return ex, sm

def put_softmax(b, ex, sm, g0, g1):
    empt = [g for g in range(g0, g1 + 1) if b.used(g) == 0 and not b.V[g]]
    n = len(ex)
    if len(empt) >= n: eg = [empt[int(i * len(empt) / n)] for i in range(n)]
    else:
        oth = [g for g in range(g0, g1 + 1) if g not in empt and b.used(g) <= 1] or list(range(g0, g1 + 1))
        k = n - len(empt)
        eg = sorted(empt + [oth[int(i * len(oth) / k)] for i in range(k)])
    for e, g in zip(ex, eg): b.put(g, e)
    g = g0
    last = len(b.m) - 1
    for (op, dep) in sm:
        lo = max(g, eg[dep] + 1)
        hi = eg[dep - dep % 4 + 8] - 1 if dep - dep % 4 + 8 < n else last
        hi = min(hi, eg[dep] + 5, last)
        r = b.place(lo, op, hi) if lo <= hi else None
        if r is None:
            r = b.put(min(lo, last), op)
        g = r
    return g

def check_temps(lines):
    cnt = {}
    for l in lines:
        x = Ins(l)
        for r in x.rd:
            if r[0] == "v" and V_E <= r[1] < V_E + 8: cnt[r] = cnt.get(r, 0) + 1
        for r in x.wr:
            if r[0] == "v" and V_E <= r[1] < V_E + 8:
                assert cnt.get(r, 2) == 2, ("temp reuse", l, cnt)
                cnt[r] = 0
    assert all(v == 2 for v in cnt.values()), cnt

def chk_ops(qts):
    if len(qts) == 2: return [f"v_add_f32 v{V_T}, v{V_LT}, v{V_LT+1}", f"v_cmp_nge_f32 vcc, s{S_THR}, v{V_T}"]
    return [f"v_cmp_nge_f32 vcc, s{S_THR}, v{V_LT+1}"]

class K2:
    def __init__(self, a):
        self.a = a; self.stubs = []
    def put_chk(self, b, g, par, qts):
        last = len(b.m) - 1
        for op in chk_ops(qts):
            r = b.place(g, op, last)
            g = r if r is not None else b.put(last, op)
        st = self.a.label("Lstub"); bk = self.a.label("Lback")
        b.post += [f"s_cbranch_vccnz {st}", f"{bk}:"]
        self.stubs.append(f"{st}:\ns_call_b64 s[{S_RA}:{S_RA+1}], K2_slow{par}\ns_branch {bk}")
    def qk_mfmas(self, par, kind, first=False):
        ms = []
        for kt in range(4):
            for qt in ((1,) if kind == "D2" else (0, 1)):
                masked = (kind == "D1" and qt == 0) or kind == "D2"
                for t in range(8):
                    d = vr(S(par, kt, qt), 4)
                    if t > 0 or masked: c = d
                    elif first and kt < 2: c = "0"
                    else: c = vr(V_NM + 4*qt, 4)
                    ms.append(f"v_mfma_f32_16x16x32_bf16 {d}, {ar(R(8*kt + t), 4)}, {ar(Qf(qt, t), 4)}, {c}")
        return ms
    def mask_ops(self, par, kt, qt, zero=False):
        src = "0" if zero else None
        return [f"v_cndmask_b32 v{S(par, kt, qt) + r}, {('0' if zero else 'v%d' % (V_NM + 4*qt))}, v7, s[{S_MASK + 2*(4*kt + r)}:{S_MASK + 2*(4*kt + r) + 1}]" for r in range(4)]
    def own_reads(self, b, slot, half):
        st = 1 if half else 2
        for f in range(8, 32): b.put(st*(f - 8), rd(f, slot, tagof(slot)))
    def next_reads(self, b, slot, half, wait):
        st = 1 if half else 2
        gb = st*24 - 1
        if wait is not None:
            b.put(gb, wait); b.put(gb, "s_barrier")
        for f in range(8): b.put(st*(24 + f), rd(f, slot, tagof(slot)))
    def X(self, par, kind, dma=("K", None)):
        b = Body(self.qk_mfmas(par, kind)); half = kind == "D2"
        self.own_reads(b, KSL[par], half)
        self.next_reads(b, VSL[par ^ 1], half, "s_waitcnt vmcnt(8)")
        put_dma(b, dma[0], KSL[par ^ 1], 1, 2 if half else 4)
        if kind != "F":
            qt = 0 if kind == "D1" else 1
            b.pre += self.mask_ops(par, 0, qt) + ["s_nop 1"]
            w = 8 if half else 16
            for kt in range(1, 4):
                left, _ = place_stream(b, self.mask_ops(par, kt, qt), w*(kt - 1), w*kt - 3)
                for o in left: b.put(w*(kt - 1), o)
        ex, sm = softmax_ops(par ^ 1, (2, 3), (0, 1), {0, 1})
        g = put_softmax(b, ex, sm, 0, len(b.m) - 7)
        self.put_chk(b, g, par ^ 1, (0, 1))
        return b
    def Y(self, par, kind, smk, smq, nxt, vslot=None, dmas=(), wait="s_waitcnt vmcnt(8)", chk=False, extra=(), xstep=0):
        ms = []
        half = kind == "D2"
        for dt in range(16):
            order = ((0, 1), (1, 1)) if half else ((0, 0), (1, 0), (1, 1), (0, 1))
            for ks, qt in order:
                d = vr(O(dt, qt), 4)
                ms.append(f"v_mfma_f32_16x16x32_bf16 {d}, {ar(R(2*dt + ks), 4)}, {vr(P(par, qt, ks), 4)}, {d}")
        b = Body(ms)
        vslot = VSL[par] if vslot is None else vslot
        self.own_reads(b, vslot, half)
        if nxt is not None: self.next_reads(b, nxt, half, wait)
        g = 1
        for (st, sl, step) in dmas:
            g = put_dma(b, st, sl, g, step); g += 1 + (g % 2)
        for i, e in enumerate(extra):
            r = b.place(g + (1 if e.startswith("s_") else 0), e)
            if r is None:
                b.post += list(extra[i:]); break
            g = r
            if xstep and not e.startswith("s_"): g = r + xstep - (2 if i + 1 < len(extra) and extra[i+1].startswith("s_") else 1)
        g = 0
        for qt in ((1,) if half else (0, 1)):
            g = b.place(g, f"v_add_f32 v{V_LS+qt}, v{V_LS+qt}, v{V_LT+qt}")
        if smk:
            ex, sm = softmax_ops(par ^ 1, smk, smq, set())
            g = put_softmax(b, ex, sm, 3, len(ms) - (7 if chk else 4))
            if chk: self.put_chk(b, g, par ^ 1, smq)
        return b
    def P0(self, kind):
        b = Body(self.qk_mfmas(0, kind, first=True))
        b.pre += [rd(f, KSL[0], "K0") for f in range(8)]
        if kind == "D1":
            b.pre += self.mask_ops(0, 0, 0, True) + self.mask_ops(0, 1, 0, True)
        self.own_reads(b, KSL[0], False)
        self.next_reads(b, KSL[1], False, "s_waitcnt vmcnt(8)")
        b.put(62, "s_waitcnt lgkmcnt(7)"); b.put(62, "s_barrier")
        put_dma(b, "V", VSL[0], 1, 2)
        b.put(49, flag_store(S_PUB))
        ops = []
        for qt in (0, 1):
            s = S(0, 0, qt); x = 28 + qt; t = 30 + qt
            ops.append([(f"v_max3_f32 v{x}, v{s}, v{s+1}, v{s+2}", 8*qt + 12), f"v_max_f32 v{x}, v{x}, v{s+3}", f"v_mov_b32 v{t}, v{x}", None,
                        f"v_permlane16_swap_b32 v{x}, v{t}", f"v_max_f32 v{x}, v{x}, v{t}", f"v_mov_b32 v{t}, v{x}", None,
                        f"v_permlane32_swap_b32 v{x}, v{t}", f"v_max_f32 v{x}, v{x}, v{t}"] +
                       [f"v_sub_f32 v{V_NM + 4*qt + r}, 0, v{x}" for r in range(4)])
        ends = []
        for o in ops:
            g = 0
            for e in o:
                if e is None: g += 2; continue
                if isinstance(e, tuple): e, g = e
                g = b.place(g, e)
            ends.append(g)
        assert ends[0] < 29 and ends[1] < 38, ends
        g = ends[0]
        if kind == "D1":
            for o in self.mask_ops(0, 2, 0): g = b.put(min(g + 1, 29), o)
            for o in self.mask_ops(0, 3, 0): g = b.place(g, o)
        g = ends[1]
        for kt in (0, 1):
            for qt in (0, 1):
                for r in range(4):
                    g = b.put(max(g, 36) + (r == 0), f"v_add_f32 v{S(0, kt, qt) + r}, v{S(0, kt, qt) + r}, v{V_NM + 4*qt}")
        ex, sm = softmax_ops(0, (0, 1), (0, 1), set())
        put_softmax(b, ex, sm, g + 1, 60)
        return b
    def slow(self, par):
        L = [f"K2_slow{par}:", "s_nop 7", "s_nop 7"]
        for qt in (0, 1):
            v = [S(par, kt, qt) + r for kt in range(4) for r in range(4)]
            L.append(f"v_max3_f32 v28, v{v[0]}, v{v[1]}, 0")
            for i in range(2, 16, 2): L.append(f"v_max3_f32 v28, v{v[i]}, v{v[i+1]}, v28")
            for sw in ("16", "32"):
                L += ["v_mov_b32 v29, v28", "s_nop 1", f"v_permlane{sw}_swap_b32 v28, v29", "v_max_f32 v28, v28, v29"]
            L += ["v_exp_f32 v29, -v28"]
            for r in range(4): L.append(f"v_sub_f32 v{V_NM + 4*qt + r}, v{V_NM + 4*qt + r}, v28")
            L.append(f"v_mul_f32 v{V_LS+qt}, v{V_LS+qt}, v29")
            for dt in range(16):
                for r in range(4): L.append(f"v_mul_f32 v{O(dt, qt) + r}, v{O(dt, qt) + r}, v29")
            for bf in (0, 1):
                for kt in range(4):
                    for r in range(4): L.append(f"v_sub_f32 v{S(bf, kt, qt) + r}, v{S(bf, kt, qt) + r}, v28")
        ex, sm = softmax_ops(par, (0, 1, 2, 3), (0, 1), set())
        for i in range(0, len(ex), 4):
            L += ex[i:i+4] + ["s_nop 0"] + [o for (o, d) in sm if i <= d < i + 4]
        L += ["s_nop 1", f"s_setpc_b64 s[{S_RA}:{S_RA+1}]"]
        return L
    def lsum(self):
        L = []
        for qt in (0, 1):
            x = V_LS + qt; t = 28 + qt
            for sw in ("16", "32"):
                L += [f"v_mov_b32 v{t}, v{x}", "s_nop 1", f"v_permlane{sw}_swap_b32 v{x}, v{t}", f"v_add_f32 v{x}, v{x}, v{t}"]
        return L
    def store_o(self, sbase, qstride, flags, comb, fill=None):
        L = []
        for qt in (0, 1):
            L += [f"v_mov_b32 v28, v{V_LS+qt}", f"v_mov_b32 v29, v{V_LS+qt}"]
            if comb: L += [f"v_mov_b32 v30, v{26+qt}", f"v_mov_b32 v31, v{26+qt}"]
            for half in (0, 1):
                if sbase: L.append(f"s_add_u32 s{S_TMP}, s{sbase}, {qt*qstride + half*4096}")
                for t in range(4*half, 4*half + 4):
                    ra, rb = O(2*t, qt), O(2*t + 1, qt)
                    prs = [ra, ra + 2, rb, rb + 2]
                    if comb:
                        for i in range(4): L.append(f"v_accvgpr_read_b32 v{41+2*i}, a{Qf(qt, t) + i}")
                    for r in prs: L.append(f"v_pk_mul_f32 {vr(r, 2)}, {vr(r, 2)}, v[28:29]")
                    if comb:
                        for i in range(4):
                            L.append(f"v_lshlrev_b32 v{40+2*i}, 16, v{41+2*i}")
                            L.append(f"v_and_b32 v{41+2*i}, 0xffff0000, v{41+2*i}")
                        for i in range(4): L.append(f"v_pk_fma_f32 {vr(prs[i], 2)}, {vr(40+2*i, 2)}, v[30:31], {vr(prs[i], 2)}")
                    for i in range(4): L.append(f"v_cvt_pk_bf16_f32 v{ra+i}, v{prs[i]}, v{prs[i]+1}")
                    if sbase: L.append(f"buffer_store_dwordx4 {vr(ra, 4)}, v{V_L}, s[{S_WS}:{S_WS+3}], s{S_TMP} offen offset:{(t & 3)*1024}{flags} ; @i:o")
                    if fill: L += fill(qt*8 + t)
        return L
    def op_out(self, n, p):
        L = []
        for qt in (0, 1):
            ra, rb = S(n & 1, 2*p, qt), S(n & 1, 2*p + 1, qt)
            L += [f"v_cvt_pk_bf16_f32 v{ra}, v{ra}, v{ra+1}", f"v_cvt_pk_bf16_f32 v{ra+1}, v{ra+2}, v{ra+3}",
                  f"v_cvt_pk_bf16_f32 v{ra+2}, v{rb}, v{rb+1}", f"v_cvt_pk_bf16_f32 v{ra+3}, v{rb+2}, v{rb+3}",
                  f"buffer_store_dwordx4 {vr(ra, 4)}, v{V_L}, s[{S_WS}:{S_WS+3}], s{S_K if qt == 0 else S_V} offen offset:{((2*n + p) & 3)*1024}{SC} ; @i:op{2*n+p}"]
        if (2*n + p) & 3 == 3: L += [f"s_add_u32 s{S_K}, s{S_K}, 4096", f"s_add_u32 s{S_V}, s{S_V}, 4096"]
        return L
    def OP(self, n):
        ms = []
        for kt in range(4):
            for qt in (0, 1):
                for t in range(8):
                    d = vr(S(n & 1, kt, qt), 4)
                    ms.append(f"v_mfma_f32_16x16x32_bf16 {d}, {ar(R(8*kt + t), 4)}, {vr(O(2*t, qt), 4)}, {d if t else 0}")
        b = Body(ms)
        if n == 0: b.pre += [r for f in range(8) for r in wo_rd(0, f)] + [wo_bump(0, 0)]
        for f in range(8, 32):
            for jj, r in enumerate(wo_rd(n, f)): b.put(2*(f - 8) + jj - (1 if f == 31 and jj else 0), r)
            if f & 7 == 7 and n < 6: b.put(2*(f - 8) + 1, wo_bump(n, f >> 3))
        if n < 6:
            b.put(47, f"s_waitcnt vmcnt(63) ; @need:wo{n+1}" + (",op6" if n == 4 else "")); b.put(47, "s_barrier")
            for f in range(8):
                for jj, r in enumerate(wo_rd(n + 1, f)): b.put(48 + 2*f + jj, r)
            if n < 5: b.put(63, wo_bump(n + 1, 0))
        def seq(ops, g, step):
            for e in ops:
                if e.startswith("s_"): b.put(min(g, 63), e)
                elif e.startswith("v_"): g = b.place(g, e) + 1
                else:
                    while b.used(g) > 1: g += 1
                    b.put(g, e); g += step
        if n == 4: seq([flag_store(34)], 49, 1)
        if n > 0: seq(self.op_out(n - 1, 1), 4, 8)
        seq(self.op_out(n, 0), 36, 8)
        if n + 3 < 7:
            g = 0
            for e in wo_dma(n + 3):
                if e.startswith("s_"): b.put(g, e)
                else:
                    g += 1
                    while b.used(g) > 1: g += 1
                    b.put(g, e); g += 3
        if n == 6: b.post += ["s_nop 7"] + self.op_out(6, 1)
        return b
    def load_q(self, sbase, qstride, flags=""):
        L = []
        for qt in (0, 1):
            for half in (0, 1):
                L.append(f"s_add_u32 s{S_TMP}, s{sbase}, {qt*qstride + half*4096}")
                for t in range(4*half, 4*half + 4):
                    L.append(f"buffer_load_dwordx4 {ar(Qf(qt, t), 4)}, v{V_L}, s[{S_WS}:{S_WS+3}], s{S_TMP} offen offset:{(t & 3)*1024}{flags} ; @i:ql")
        return L


def flag_store(soff): return f"buffer_store_dword v{V_ONE}, v{V_Z}, s[{S_WS}:{S_WS+3}], s{soff} offen sc1"

def att_setup_ops(conv):
    Sx = f"""
    s_lshl_b32 s{S_M}, s{S_W}, 13
    s_lshl_b32 s{S_HB}, s{S_H}, 20
    s_add_u32 s{S_HB}, s{S_HB}, s{S_M}
    s_lshl_b32 s{S_TMP}, s{S_I}, 1
    """
    if conv:
        Sx += f"""
        s_mov_b32 s{S_K}, s{S_HB}
        s_sub_u32 s{S_KREM}, 14, s{S_TMP}
        s_mov_b32 s{S_KNX}, s{S_HB}
        s_add_u32 s{S_KRN}, s{S_TMP}, 2
        s_add_u32 s{S_VNX}, s{S_HB}, {WS_V}
        s_sub_u32 s{S_CNT}, 7, s{S_I}
        s_mov_b32 s{S_MODE}, 2
        s_sub_u32 s{S_QB}, 15, s{S_I}
        """
    else:
        Sx += f"""
        s_sub_u32 s{S_TMP}, 14, s{S_TMP}
        s_lshl_b32 s{S_TMP}, s{S_TMP}, 15
        s_add_u32 s{S_K}, s{S_HB}, s{S_TMP}
        s_mov_b32 s{S_KNX}, {INVALID}
        s_mov_b32 s{S_KRN}, 0
        s_mov_b32 s{S_VNX}, {INVALID}
        s_sub_u32 s{S_QB}, 15, s{S_I}
        s_cmp_eq_u32 s{S_I}, 7
        s_cselect_b32 s{S_MODE}, 0, 1
        s_bitcmp1_b32 s2, 4
        s_cselect_b32 s{S_KREM}, 16, 18
        s_cselect_b32 s{S_CNT}, 7, 8
        s_cselect_b32 s{S_QB}, 7, s{S_QB}
        """
    Sx += f"""
    s_add_u32 s{S_V}, s{S_K}, {WS_V}
    s_mov_b32 s{S_VREM}, s{S_KREM}
    s_mov_b32 s{S_VRN}, s{S_KRN}
    s_mov_b32 s{S_THR}, {f32bits(2.0**24)}
    s_lshl_b32 s{S_TMP}, s{S_I}, 3
    s_add_u32 s{S_FLAG}, s{S_FHD}, s{S_TMP}
    s_add_u32 s{S_FLAG}, s{S_FLAG}, {FL_PART + 4}
    s_lshl_b32 s{S_QN}, s{S_I}, 16
    s_add_u32 s{S_QN}, s{S_QN}, s{S_HB}
    s_add_u32 s{S_QN}, s{S_QN}, {WS_Q}
    s_lshl_b32 s{S_PB}, s{S_H}, 3
    s_add_u32 s{S_PB}, s{S_PB}, s{S_I}
    s_lshl_b32 s{S_PB}, s{S_PB}, 2
    s_add_u32 s{S_PB}, s{S_PB}, s{S_W}
    s_lshl_b32 s{S_PART}, s{S_PB}, 10
    s_add_u32 s{S_PART}, s{S_PART}, {WS_ML}
    s_lshl_b32 s{S_PB}, s{S_PB}, 14
    s_add_u32 s{S_PB}, s{S_PB}, {WS_PART}
    s_lshl_b32 s{S_WOB}, s{S_H}, 2
    s_add_u32 s{S_WOB}, s{S_WOB}, s{S_W}
    s_mul_i32 s{S_WOB}, s{S_WOB}, {64*896}
    s_cmp_eq_u32 s{S_MODE}, 1
    s_cselect_b32 s{S_OCB}, s{S_FLAG}, s{S_FHD}
    s_cselect_b32 s{S_PL}, s{S_PB}, {INVALID}
    s_cselect_b32 s{S_PM}, s{S_PART}, {INVALID}
    """
    V1 = f"""
    v_lshrrev_b32 v3, 6, v0
    v_and_b32 v4, 63, v0
    v_add_u32 v{V_LV}, 0x10000, v{V_L}
    v_and_b32 v5, 15, v4
    v_lshrrev_b32 v6, 4, v4
    v_lshlrev_b32 v6, 2, v6
    v_sub_u32 v5, v5, v6
    v_lshl_add_u32 v5, v3, 4, v5
    """
    for kt in range(4):
        for r in range(4):
            V1 += f"v_cmp_gt_i32 s[{S_MASK + 2*(4*kt + r)}:{S_MASK + 2*(4*kt + r) + 1}], {16*kt + r}, v5\n"
    V1 += f"""
    v_mov_b32 v7, 0xff800000
    v_mov_b32 v{V_ONE}, 1
    v_mov_b32 v{V_Z}, v26
    """
    V2 = ""
    sp = lambda t: [l.strip() for l in t.split("\n") if l.strip()]
    return sp(Sx), sp(V1), sp(V2)
def zero_o(wide=True):
    if wide: return [f"v_mov_b64 {vr(r, 2)}, 0" for r in list(range(128, 256, 2)) + [V_LS]]
    return [f"v_mov_b32 v{r}, 0" for r in [V_LS, V_LS + 1] + list(range(128, 256))]

def gen_att(c):
    a = c.a; k = K2(a)
    a("K2_item:")
    c.ST(4, 28)
    p0f, p0d = k.P0("F"), k.P0("D1")
    y0 = k.Y(0, "F", (0, 1), (0, 1), KSL[0], dmas=[("V", VSL[1], 4)])
    x0 = k.X(0, "F")
    y1 = k.Y(1, "F", (0, 1), (0, 1), KSL[1], dmas=[("V", VSL[0], 4)])
    x1 = k.X(1, "F")
    x1.put(56, f"s_sub_u32 s{S_CNT}, s{S_CNT}, 1")
    x1.post += [f"s_cmp_lg_u32 s{S_CNT}, 0", "s_cbranch_scc1 K2_loop"]
    dy0 = k.Y(0, "F", (0, 1), (0, 1), KSL[0], dmas=[("V", VSL[1], 4)])
    dx0 = k.X(0, "D1")
    dy1 = k.Y(1, "F", (0, 1), (0, 1), KSL[1], dmas=[("V", VSL[0], 4)], wait="s_waitcnt vmcnt(9)", extra=[TPOLL])
    p0d.pre.insert(0, TPOLL)
    dx1 = k.X(1, "D2", dma=("V", None))
    dx1.post += ["v_cmp_gt_u32 vcc, 1, v3", "s_cbranch_vccnz K2_tspin", "K2_tok:"]
    pl = [f"buffer_load_dwordx4 a[252:255], v{V_L}, s[{S_WS}:{S_WS+3}], s{S_PM} offen sc1"] + k.load_q(S_PL, 8192, SC)
    dy2 = k.Y(0, "D1", (0, 1, 2, 3), (1,), KSL[0], wait="s_waitcnt vmcnt(63) ; @need:K0", chk=True, extra=pl, xstep=4)
    fix_vm([dx1, dy2])
    dy3 = k.Y(1, "D2", (), (), None, vslot=KSL[0])
    wv, wsx = wo_setup()
    left, _ = place_stream(dy3, wsx, 0); assert not left
    left, g = place_stream(dy3, wv, 1); assert not left
    left, _ = place_stream(dy3, wo_dma(0), 22); dy3.post += left
    ny0 = k.Y(0, "F", (0, 1, 2, 3), (0, 1), VSL[1], dmas=[("V", VSL[1], 2)], wait="s_waitcnt vmcnt(0)", chk=True)
    ny1 = k.Y(1, "F", (), (), None, dmas=[("K", KSL[1], 2)], extra=k.load_q(S_QN, 32768, SC))
    paths = [[p0f, x1, y0, x0, y1, x1, y0, x0, y1, x1, dy0, dx0, dy1, dx1, dy2, dy3], [p0f, x1, ny0, ny1], [p0d, dx1, dy2, dy3]]
    for p in paths: insert_lgkm(p)
    print("att overflow", [b.over() for b in [p0f, p0d, y0, x0, y1, x1, dy0, dx0, dy1, dx1, dy2, dy3, ny0, ny1]])
    E = lambda b, x=a: x("\n".join(b.lines()))
    a(f"s_cmp_eq_u32 s{S_CNT}, 0\ns_cbranch_scc1 K2_p0d")
    E(p0f); a("s_branch K2_x1")
    a(".p2align 6\nK2_loop:"); E(y0); E(x0); E(y1); a("K2_x1:"); E(x1)
    a(f"s_cmp_eq_u32 s{S_MODE}, 2\ns_cbranch_scc1 K2_ntail")
    E(dy0); E(dx0); E(dy1); a("K2_dx1:"); E(dx1); E(dy2); E(dy3)
    c.ST(5, 28)
    f = Asm()
    f("\n".join(k.lsum()))
    f(f"""
    s_lshl_b32 s{S_K}, s{S_QB}, 3
    s_add_u32 s{S_K}, s{S_K}, s{S_W}
    s_lshl_b32 s{S_K}, s{S_K}, 4
    s_add_u32 s{S_K}, s{S_K}, s{S_H}
    s_mul_i32 s{S_K}, s{S_K}, {14*1024}
    s_add_u32 s{S_K}, s{S_K}, {WS_OP}
    s_add_u32 s{S_V}, s{S_K}, {4*16*14*1024}
    """)
    wops = wo_dma(1) + wo_dma(2)
    grp = []; cur = []
    for e in wops:
        if not e.startswith("s_"):
            grp.append(cur + [e]); cur = []
        else: cur += [e] + (["s_nop 0"] if "m0," in e else [])
    grp[-1] += cur
    fill = lambda i: grp[i]
    a(f.text())
    a(f"s_cmp_lg_u32 s{S_MODE}, 1\ns_cbranch_scc1 K2_plain")
    f1 = Asm()
    f1(f"s_waitcnt vmcnt(8)")
    for i in range(4): f1(f"v_accvgpr_read_b32 v{32+i}, a{252+i}")
    for qt in (0, 1):
        nb, lb = 32 + 2*qt, 33 + 2*qt
        f1(f"""
        v_min_f32 v36, v{V_NM + 4*qt}, v{nb}
        v_sub_f32 v37, v36, v{V_NM + 4*qt}
        v_sub_f32 v38, v36, v{nb}
        v_exp_f32 v37, v37
        v_exp_f32 v38, v38
        s_nop 0
        v_mul_f32 v38, v38, v{lb}
        v_fma_f32 v36, v{V_LS+qt}, v37, v38
        v_rcp_f32 v36, v36
        s_nop 0
        v_mul_f32 v{V_LS+qt}, v37, v36
        v_mul_f32 v{26+qt}, v38, v36
        """)
    f1("\n".join(k.store_o(None, 0, SC, True, fill)))
    a(f1.text())
    a("K2_done:")
    c.ST(6, 28)
    ops = [k.OP(n) for n in range(7)]
    ops[0].pre[:0] = ["s_waitcnt vmcnt(16)", "s_barrier"]
    c.op_hook(ops)
    fix_vm([list(wops)] + ops)
    insert_lgkm(ops)
    print("op overflow", [b.over() for b in ops])
    for b in ops: E(b)
    o = Asm(); o.nlabel = 9100
    f0 = Asm()
    f0(f"v_rcp_f32 v{V_LS}, v{V_LS}\nv_rcp_f32 v{V_LS+1}, v{V_LS+1}\ns_nop 0")
    f0("\n".join(k.store_o(None, 0, SC, False, fill)))
    o("K2_plain:"); o(f0.text()); o("s_branch K2_done")
    o("K2_tspin:"); spin(o, [TPOLL], ["v_cmp_gt_u32 vcc, 1, v3"]); o("s_branch K2_tok")
    o("K2_p0d:"); E(p0d, o); o("s_branch K2_dx1")
    o("K2_ntail:"); E(ny0, o); E(ny1, o)
    g = Asm(); g.nlabel = 9150
    if c.stamps: stamp(g, 17, 2, S_WS, vt=28, st=S_ST)
    g("\n".join(k.lsum()))
    g(f"""
    v_mov_b32 v8, v{V_NM}
    v_mov_b32 v9, v{V_LS}
    v_mov_b32 v10, v{V_NM+4}
    v_mov_b32 v11, v{V_LS+1}
    v_rcp_f32 v{V_LS}, v{V_LS}
    v_rcp_f32 v{V_LS+1}, v{V_LS+1}
    buffer_store_dwordx4 v[8:11], v{V_L}, s[{S_WS}:{S_WS+3}], s{S_PART} offen{HS}
    """)
    g("\n".join(k.store_o(S_PB, 8192, HS, False)))
    g(f"s_mov_b32 s{S_MODE}, 0\ns_mov_b32 s{S_QB}, s{S_I}\ns_mov_b32 s{S_CNT}, s{S_I}")
    if c.stamps: stamp(g, 18, 2, S_WS, vt=28, st=S_ST)
    g("\n".join(zero_o()))
    g(f"s_mov_b32 s{S_PUB}, s{S_FLAG}")
    g("s_waitcnt vmcnt(63) ; @need:ql\ns_barrier")
    fix_vm([ny1, g.lines])
    o(g.text()); o("s_branch K2_item")
    for st in k.stubs: o(st)
    for par in (0, 1): o("\n".join(k.slow(par)))
    L = lambda p: [l for b in p for l in b.lines()]
    for p in paths: check_temps(L([b for b in p if b is not dy3]))
    tr = [L(paths[0]) + f.lines + f0.lines + L(ops), L(paths[0]) + f.lines + f1.lines + L(ops),
          L(paths[1]) + g.lines + L(paths[2]) + f.lines + f0.lines + L(ops), L(paths[1]) + g.lines + L(paths[0]) + f.lines + f0.lines + L(ops),
          L([p0f, x1]) + k.slow(0) + L([y0, x0]) + k.slow(1) + L([y1])]
    return dict(traces=tr, ool=o.text(), k=k)
```

```python
from asmlib import *
from sched import *
MB = 1 << 20
WS_K, WS_V, WS_Q, WS_CTX, WS_PART, WS_U = 0, 16*MB, 32*MB, 48*MB, 64*MB, 80*MB
WS_STAMP = 96*MB
U_STRIDE = (2048 + 64) * 2
import math, struct
def f32bits(x): return struct.unpack("<I", struct.pack("<f", x))[0]
QSCALE = f32bits(math.log2(math.e) / 16.0)

def srd(a, d, base, nbytes):
    a(f"s_mov_b32 s{d}, s{base}\ns_mov_b32 s{d+1}, s{base+1}\ns_mov_b32 s{d+2}, {nbytes}\ns_mov_b32 s{d+3}, 0x20000")

def stamp(a, idx, sreg_wg, srd_ws, vt=10, st=96):
    a(f"""
    s_memtime s[{st}:{st+1}]
    s_memrealtime s[{st+2}:{st+3}]
    v_cmp_ne_u32 s[{st+4}:{st+5}], 0, v0
    s_waitcnt lgkmcnt(0)
    v_mov_b32 v{vt}, s{st}
    v_mov_b32 v{vt+1}, s{st+2}
    s_lshl_b32 s{st}, s{sreg_wg}, 8
    s_add_u32 s{st}, s{st}, {WS_STAMP + idx*8}
    v_cndmask_b32 v{vt+2}, 0, -2.0, s[{st+4}:{st+5}]
    buffer_store_dwordx2 v[{vt}:{vt+1}], v{vt+2}, s[{srd_ws}:{srd_ws+3}], s{st} offen
    """)
```

```python
from common import *
S_W = 3
S_WS = 4
S_A, S_B, S_C = 8, 12, 16
S_H, S_I, S_T, S_T2 = 20, 21, 22, 23
PTR = lambda off: 64 + off // 4
S_ST = 94
V_L = 1
WS_FLAG = 90*MB
FL_KV, FL_Q, FL_PART, FL_CTX, FL_CONV, FL_WO, FL_CT2, FL_PREP = 0, 64, 4096, 8192, 12288, 16384, 8192 + 64, 20480
WS_ML = WS_PART + 8*MB
WS_U1 = 82*MB
WS_WO = 86*MB
WS_OP = 100*MB
S_FKV = 66
S_FHD = 70
S_PUB = 71
S_FWO = 67
WS_Z = 84*MB
INVALID = 0xC0000000
SC = " sc1"
SLEEP = 2

class Ctx:
    def __init__(self, stamps=False):
        self.a = Asm(); self.stamps = stamps; self.diag = False; self.opt = {}
    def ST(self, i, vt):
        if self.stamps: stamp(self.a, i, 2, S_WS, vt=vt, st=S_ST)

def one_lane_store(x, sval_v, vzero, soff):
    x(f"s_mov_b64 exec, 1\nbuffer_store_dword v{sval_v}, v{vzero}, s[{S_WS}:{S_WS+3}], s{soff} offen sc1\ns_mov_b64 exec, -1")

def set_flag(a, soff, vt):
    l = a.label("Lf")
    a(f"s_cmp_lg_u32 s{S_W}, 0\ns_cbranch_scc1 {l}\nv_mov_b32 v{vt}, 1\nv_mov_b32 v{vt+1}, 0")
    one_lane_store(a, vt, vt + 1, soff)
    a(f"{l}:")

def spin(a, load, test):
    l = a.label("Lp"); d = a.label("Lpd")
    a(f"{l}:"); a("\n".join(load)); a("s_waitcnt vmcnt(0)"); a("\n".join(test))
    a(f"s_cbranch_vccz {d}\ns_sleep {SLEEP}\ns_sub_u32 s101, s101, 1\ns_cbranch_scc0 {l}\ns_mov_b32 s101, 0\n{d}:")

def poll(a, soff, n, vt, srd=S_WS, val=1):
    l = a.label("Lp"); d = a.label("Lpd")
    a(f"""
    v_lshrrev_b32 v{vt+1}, 4, v{V_L}
    v_min_u32 v{vt+1}, {n-1}, v{vt+1}
    v_lshlrev_b32 v{vt+1}, 2, v{vt+1}
    {l}:
    buffer_load_dword v{vt}, v{vt+1}, s[{srd}:{srd+3}], {soff} offen sc1
    s_waitcnt vmcnt(0)
    v_cmp_gt_u32 vcc, {val}, v{vt}
    s_cbranch_vccz {d}
    s_sleep {SLEEP}
    s_sub_u32 s101, s101, 1
    s_cbranch_scc0 {l}
    s_mov_b32 s101, 0
    {d}:
    """)

def diag_body(b, gb, v=31):
    b.put(gb - 3, "s_memtime s[96:97]")
    b.put(gb, "s_mov_b32 m0, s100"); b.put(gb, "s_add_u32 s100, s100, 1")
    b.V[gb].append(Ins(f"v_writelane_b32 v{v}, s96, m0"))
def diag_now(a, v=31):
    a(f"s_memtime s[96:97]\ns_mov_b32 m0, s100\ns_add_u32 s100, s100, 1\ns_waitcnt lgkmcnt(0)\nv_writelane_b32 v{v}, s96, m0")
def diag_dump(a, v=31, t=30):
    a(f"v_lshlrev_b32 v{t}, 2, v0\ns_lshl_b32 s96, s2, 10\ns_add_u32 s96, s96, {97*MB}\nbuffer_store_dword v{v}, v{t}, s[{S_WS}:{S_WS+3}], s96 offen")
```

```python
from mcommon import *

V_CB, V_WB, V_CD, V_WD, V_PF, V_PD, V_QB = 2, 4, 12, 16, 20, 21, 22
V_Z, V_ONE = 26, 27
S_C0, S_C1, S_W0, S_W1, S_MC, S_MW, S_CNT, S_OUT, S_DL = 24, 25, 26, 27, 28, 29, 30, 31, 32
S_PQ = 40
S_QB = 37
KVSC = SC
SLOT_C = (0, 32768); SLOT_W = (65536, 98304)
XSL = (0, 16384, 32768, 49152); QSL = (131072, 65536, 98304)
def preg(p, m): return ("v", 32 + (2*p + m)*4) if p < 24 else ("a", 192 + ((p - 24)*2 + m)*4)
def fmt(k): return vr(k[1], 4) if k[0] == "v" else ar(k[1], 4)
def acc1(typ, wj, ci): return preg((wj >> 1)*8 + ci, wj & 1) if typ == "K" else preg(wj*4 + (ci >> 1), ci & 1)
def acc2(wj, ci):
    n = wj*8 + ci
    return preg(n, 1) if n < 24 else ("v", 224 + (n - 24)*4)
def CF(buf, ci, s): return ar((buf*16 + ci*2 + s)*4, 4)
def WFr(ring, s): return 128 + (ring*2 + s)*4
def ltag(off):
    return f"L{off >> 14}"
def tags(kind, off, size): return " ".join(f"@{kind}:L{o}" for o in range(off >> 14, (off + size) >> 14))

def rdW(base, imm, ring, slot):
    return [f"ds_read_b64_tr_b16 {ar(WFr(ring, s) + 2*jj, 2)}, v{base} offset:{imm + (32*s + 4*jj)*512}"
            for s in range(2) for jj in range(2)]
def rdC(slot, size, buf):
    return [f"ds_read_b128 {CF(buf, ci, s)}, v{V_CB+s} offset:{slot + ci*2048}" for ci in range(8) for s in range(2)]
def dmaC(slot, size, gq, inst):
    so = S_C0 + gq
    return [f"s_add_u32 m0, s{S_MC}, {slot + gq*4096}"] + \
           [f"buffer_load_dwordx4 v{V_CD+j}, s[{S_A}:{S_A+3}], s{so} offen offset:{j*1024} lds ; {tags('w', slot, size)} @i:{inst}" for j in range(4)] + \
           [f"s_add_u32 s{so}, s{so}, 128"]
def dmaW(slot, gq, inst, WNT=''):
    so = S_W0 + gq
    return [f"s_add_u32 m0, s{S_MW}, {slot + gq*16384}"] + \
           [f"buffer_load_dwordx4 v{V_WD+j}, s[{S_B}:{S_B+3}], s{so} offen offset:{j*1024}{WNT} lds ; {tags('w', slot, 32768)} @i:{inst}" for j in range(4)] + \
           [f"s_add_u32 s{so}, s{so}, {64*8192}"]
def put_groups(b, gs, g0, step=4):
    g = g0
    for grp in gs:
        b.put(g - 1, grp[0])
        for p in grp[1:5]:
            b.put(g, p); g += step
        for i, e in enumerate(grp[5:]): b.put(g - step + 1 + min(i, step - 2), e)
    return g
def plain(a, L):
    for e in L:
        a(e)
        if e.startswith("s_add_u32 m0") or e.startswith("s_mov_b32 m0"): a("s_nop 0")
S_PO, S_PS, S_PL = 43, 47, 51
S_DBG = 60
S_SIG = 55
S_PB1, S_PB2 = 82, 83
PFLOAD = f"buffer_load_dword v{V_PD}, v{V_PF}, s[{S_C}:{S_C+3}], s{S_PO} offen"
def pf_loads(nt):
    if not nt: return [PFLOAD]
    return [f"s_cmp_eq_u32 s{S_W}, 0", f"s_cselect_b32 s{S_T2}, s{S_PO}, {INVALID}", PFLOAD.replace(f"s{S_PO} offen", f"s{S_T2} offen nt"),
            f"s_cselect_b32 s{S_T2}, {INVALID}, s{S_PO}", PFLOAD.replace(f"s{S_PO} offen", f"s{S_T2} offen")]
def pf_shift():
    L = [f"s_add_u32 s{S_PO}, s{S_PO}, s{S_PS}", f"s_cmp_ge_u32 s{S_PO}, s{S_PL}", f"s_cselect_b32 s{S_PO}, 0, s{S_PO}",
         f"s_cselect_b32 s{S_PL}, s{S_PQ+2}, s{S_PL}"]
    src = [S_PQ + 4*i for i in range(2)]
    dst = [S_C] + src[:-1]
    for d, s in zip(dst, src):
        L += [f"s_cselect_b64 s[{d}:{d+1}], s[{s}:{s+1}], s[{d}:{d+1}]", f"s_cselect_b32 s{d+2}, s{s+2}, s{d+2}"]
    L.append(f"s_cselect_b32 s{src[-1]+2}, 0, s{src[-1]+2}")
    return L

def cdma_consts(RS, t0):
    return f"""
    v_lshrrev_b32 v{t0}, 7, v{V_L}
    v_lshrrev_b32 v{t0+1}, 1, v{t0}
    v_lshlrev_b32 v{t0+1}, 4, v{t0+1}
    v_and_b32 v{t0+2}, 0x70, v{V_L}
    v_xor_b32 v{t0+1}, v{t0+1}, v{t0+2}
    v_mul_u32_u24 v{t0}, {RS}, v{t0}
    v_add_u32 v{V_CD}, v{t0}, v{t0+1}
    v_xor_b32 v{t0+1}, 64, v{t0+1}
    v_add_u32 v{t0}, v{t0}, v{t0+1}
    v_add_u32 v{V_CD+1}, {8*RS - 1024}, v{t0}
    v_add_u32 v{V_CD+2}, {2*(8*RS - 1024)}, v{V_CD}
    v_add_u32 v{V_CD+3}, {3*(8*RS - 1024)}, v{t0}
    """.strip().split("\n")

TWOBAR = 1
def body1(t, typ, early, late, need1, need2, first=False, nxt=None):
    pb = t & 1
    ms = []
    for wj in range(8):
        for ci in range(8):
            for s in range(2):
                w = ar(WFr(wj & 1, s), 4); c = CF(pb, ci, s)
                x, y = (w, c) if typ == "K" else (c, w)
                d = fmt(acc1(typ, wj, ci))
                ms.append(f"v_mfma_f32_16x16x32_bf16 {d}, {x}, {y}, {'0' if first and s == 0 else d}")
    b = Body(ms); gb = 111
    for wj in range(7):
        for i, r in enumerate(rdW(V_WB + wj + 1, pb*32768, (wj + 1) & 1, SLOT_W[pb])): b.put(16*wj + 2*i, r)
    b.gend = put_groups(b, early, 1)
    rc, rw = nxt if nxt else (rdC(SLOT_C[pb ^ 1], 32768, pb ^ 1), rdW(V_WB, (pb ^ 1)*32768, 0, SLOT_W[pb ^ 1]))
    if TWOBAR:
        g1 = TWOBAR
        b.put(g1, f"s_waitcnt vmcnt(63) ; @need:{need1[0]}"); b.put(g1, "s_barrier")
        free = [g for g in range(g1 + 1, gb - 5) if not b.V[g] and (g % 2 == 0 or g % 16 in (11, 15))]
        n2 = need2
    else:
        free = [g for g in range(8, gb - 6, 2) if not b.V[g]]
        n2 = need2 + "," + need1[1]
    assert len(free) >= len(rc)
    for i, r in enumerate(rc): b.put(free[int(i * len(free) / len(rc))], r)
    b.put(gb, f"s_waitcnt vmcnt(63) lgkmcnt(0) ; @need:{n2}"); b.put(gb, "s_barrier")
    for i, r in enumerate(rw): b.put(gb + 1 + 2*i, r)
    put_groups(b, late, gb + 2)
    return b

def body2(q):
    ms = []
    for wj in range(4):
        for ci in range(8):
            for s in range(2):
                d = fmt(acc2(wj, ci))
                ms.append(f"v_mfma_f32_16x16x32_bf16 {d}, {ar(WFr(wj & 1, s), 4)}, {CF(q & 1, ci, s)}, {'0' if q == 0 and s == 0 else d}")
    b = Body(ms); gb = 47
    bump = lambda j, t: f"v_add_u32 v{V_QB+j}, {(QSL[(t+1) % 3] - QSL[t % 3]) & 0xffffffff}, v{V_QB+j}"
    for wj in range(3):
        for i, r in enumerate(rdW(V_QB + wj + 1, 0, (wj + 1) & 1, QSL[q % 3])): b.put(16*wj + 2*i, r)
        if q < 6: b.put(16*wj + 6, bump(wj + 1, q))
    early = ([dmaW(QSL[(q + 2) % 3], 1, f"Wq{q+2}")] if q + 2 < 7 else []) + ([dmaC(XSL[q & 3], 16384, 0, f"x{q+4}")] if q + 4 < 7 else [])
    b.gend = put_groups(b, early, 1)
    if q < 6:
        rc = rdC(XSL[(q + 1) & 3], 16384, (q + 1) & 1)
        free = [g for g in range(0, gb - 4) if not b.V[g] and (g % 2 == 0 or g % 8 == 3)]
        for i, r in enumerate(rc): b.put(free[int(i * len(free) / len(rc))], r)
        need = f"Wq{q+1}" + (f",x{q+2}" if q + 2 < 7 else "")
        b.put(gb, f"s_waitcnt vmcnt(63) lgkmcnt(0) ; @need:{need}"); b.put(gb, "s_barrier")
        for i, r in enumerate(rdW(V_QB, 0, 0, QSL[(q + 1) % 3])): b.put(gb + 1 + 2*i, r)
        if q < 5: b.put(gb + 7, bump(0, q + 1))
        if q + 3 < 7: put_groups(b, [dmaW(QSL[q % 3], 0, f"Wq{q+3}")], gb + 2)
    return b

def cvt_pair(ra, rb):
    return [f"v_cvt_pk_bf16_f32 v{ra}, v{ra}, v{ra+1}", f"v_cvt_pk_bf16_f32 v{ra+1}, v{ra+2}, v{ra+3}",
            f"v_cvt_pk_bf16_f32 v{ra+2}, v{rb}, v{rb+1}", f"v_cvt_pk_bf16_f32 v{ra+3}, v{rb+2}, v{rb+3}"]
def kv_store(p):
    pre = []
    if p < 24: r = preg(p, 0)[1]
    else:
        ra, rb = preg(p - 24, 0)[1], preg(8, 0)[1]
        for m, d in ((0, ra), (1, rb)):
            pre += [f"v_accvgpr_read_b32 v{d+i}, a{preg(p, m)[1] + i}" for i in range(4)]
        pre += cvt_pair(ra, rb); r = ra
    k = ((p + 1) & -(p + 1)).bit_length() - 1
    post = [f"s_add_u32 s{S_OUT}, s{S_OUT}, s{S_DL + k}"] if p < 31 else []
    return pre, f"buffer_store_dwordx4 {vr(r, 4)}, v{V_L}, s[{S_WS}:{S_WS+3}], s{S_OUT} offen{KVSC} ; @i:kv", post

PK, PV, PSH, PAD = 224, 236, 248, 252
S_SB, S_CB = 38, 39
EXL = QSL[0]
sp = lambda t: [l.strip() for l in t.split("\n") if l.strip()]
def side_a(b, g0):
    SX = 56
    def setsrd(p, n): return [f"s_mov_b64 s[{SX}:{SX+1}], s[{PTR(p)}:{PTR(p)+1}]", f"s_mov_b32 s{SX+2}, {n}"]
    left, g = place_stream(b, sp(f"""
    s_lshl_b32 s{S_T}, s{S_SB}, 3
    s_lshl_b32 s{S_T2}, s{S_CB}, 5
    v_and_b32 v{PAD}, 31, v0
    v_lshrrev_b32 v{PAD+1}, 5, v0
    v_add_u32 v{PAD+1}, s{S_T}, v{PAD+1}
    v_add_u32 v{PAD}, s{S_T2}, v{PAD}
    v_mul_u32_u24 v{PAD+2}, {8*896}, v{PAD+1}
    v_lshl_add_u32 v{PAD+2}, v{PAD}, 2, v{PAD+2}
    v_lshlrev_b32 v{PAD}, 4, v{PAD}
    v_add_u32 v{PAD+3}, {4*896}, v{PAD+2}
    v_subrev_u32 v22, {4*896}, v{PAD+2}
    v_subrev_u32 v23, {3*896}, v{PAD+2}
    v_subrev_u32 v24, {2*896}, v{PAD+2}
    v_subrev_u32 v25, {896}, v{PAD+2}
    """), 2, g0); assert not left
    L = setsrd(A_SHIFT, 3584) + [f"s_mov_b32 s{SX+3}, 0x20000", f"buffer_load_dwordx4 {vr(PSH, 4)}, v{PAD}, s[{SX}:{SX+3}], 0 offen"] + setsrd(A_K, 1835008)
    L += [f"buffer_load_dword v{PK+j}, v{22+j}, s[{SX}:{SX+3}], 0 offen nt" for j in range(4)]
    L += [f"buffer_load_dword v{PK+4+j}, v{PAD + 2 + (j >> 2)}, s[{SX}:{SX+3}], 0 offen offset:{(j & 3)*896} nt" for j in range(8)]
    L += setsrd(A_V, 1835008)[:1] + [f"buffer_load_dword v{PV}, v25, s[{SX}:{SX+3}], 0 offen nt"]
    L += [f"buffer_load_dword v{PV+1+j}, v{PAD + 2 + (j >> 2)}, s[{SX}:{SX+3}], 0 offen offset:{(j & 3)*896} nt ; @i:prep" for j in range(8)]
    g = g0
    for e in L:
        if e.startswith("s_"): g = b.put(g + 1, e) - 1
        else:
            g += 1
            while any(y.kind in ("vld", "dma") for y in b.V[g]): g += 1
            b.put(g, e)
    b.gld = g
def side_b(b):
    un = lambda d, s, hi: f"v_and_b32 v{d}, 0xffff0000, v{s}" if hi else f"v_lshlrev_b32 v{d}, 16, v{s}"
    kk, ww, vt, rr, pk = 22, [28, 29, 30, PAD + 1], 247, PAD + 2, 246
    A0 = sp(f"""
    v_and_b32 v{PAD}, 31, v0
    v_lshrrev_b32 v{PAD+1}, 5, v0
    v_lshlrev_b32 v{PAD}, 8, v{PAD}
    v_lshl_add_u32 v{PAD}, v{PAD+1}, 4, v{PAD}
    v_add_u32 v{PAD}, {EXL + 16384}, v{PAD}
    """)
    L = []
    for c in range(2):
        for j in range(4): L.append(un(ww[j], PSH + 2*c + (j >> 1), j & 1))
        for j in range(3): L.append(un(kk + j, PK + j, c))
        for s in range(9):
            r = rr + (s & 1)
            L.append(f"v_mul_f32 v{r}, v{kk + s % 4}, v{ww[3]}")
            L.append(un(kk + (3 + s) % 4, PK + 3 + s, c))
            L.append(un(vt, PV + s, c))
            for j in (2, 1, 0): L.append(f"v_fmac_f32 v{r}, v{kk + (3 + s - j) % 4}, v{ww[j]}")
            L.append(f"v_mul_f32 v{r}, v{r}, v{vt}")
            if s >= 1:
                L.append(f"v_cvt_pk_bf16_f32 v{pk}, v{rr + ((s - 1) & 1)}, v{r}")
                L.append(f"v_accvgpr_write_b32 a{176 + 8*c + 4*(s & 1) + ((s - 1) >> 1)}, v{pk}")
    wr = [f"ds_write_b128 v{PAD}, {ar(176 + 8*c + 4*cp, 4)} offset:{cp*8192 + c*128} ; @w:L9" for c in range(2) for cp in range(2)]
    return A0, L, wr

def force_stream(b, ops, g0, g1):
    cap = [(g, 2 - b.used(g)) for g in range(g0, g1 + 1)]
    tot = sum(max(0, c) for _, c in cap)
    extra = max(0, len(ops) - tot)
    n = g1 - g0 + 1
    i = 0
    for k, (g, c) in enumerate(cap):
        c = max(0, c) + (int((k + 1)*extra/n) - int(k*extra/n))
        for _ in range(c):
            if i < len(ops): b.put(g, ops[i]); i += 1
    assert i == len(ops)

def gen_p12(c):
    global TWOBAR
    TWOBAR = c.opt.get("tb", 0)
    a = c.a
    a(f"""
    s_cmp_ge_u32 s2, 256
    s_cbranch_scc1 M_end
    s_load_dwordx16 s[64:79], s[0:1], 0
    s_load_dwordx8 s[80:87], s[0:1], 64
    s_load_dwordx4 s[88:91], s[0:1], 96
    s_load_dwordx2 s[92:93], s[0:1], 112
    {"s_memtime s[98:99]" if c.diag else ""}
    v_lshrrev_b32 v28, 6, v0
    v_and_b32 v29, 63, v0
    v_lshlrev_b32 v{V_L}, 4, v29
    v_readfirstlane_b32 s{S_W}, v28
    s_and_b32 s{S_H}, s2, 7
    s_lshl_b32 s{S_H}, s{S_H}, 1
    s_bfe_u32 s{S_T}, s2, 0x10003
    s_add_u32 s{S_H}, s{S_H}, s{S_T}
    s_lshr_b32 s{S_I}, s2, 5
    s_mov_b32 s101, 0x40000
    """)
    a("\n".join(cdma_consts(2048, 26)))
    a(f"""
    v_lshrrev_b32 v26, 5, v29
    v_and_b32 v27, 31, v29
    s_and_b32 s{S_T}, s{S_W}, 1
    s_lshl_b32 s{S_T}, s{S_T}, 2
    v_or_b32 v28, s{S_T}, v26
    v_lshlrev_b32 v28, 1, v28
    v_xor_b32 v27, v27, v28
    v_lshlrev_b32 v27, 4, v27
    v_lshl_add_u32 v{V_WD}, v26, 13, v27
    v_xor_b32 v26, 64, v{V_WD}
    v_add_u32 v{V_WD+1}, {16384 - 1024}, v26
    v_add_u32 v{V_WD+2}, {2*(16384 - 1024)}, v{V_WD}
    v_add_u32 v{V_WD+3}, {3*(16384 - 1024)}, v26
    s_lshl_b32 s{S_MC}, s{S_W}, 13
    s_lshl_b32 s{S_MW}, s{S_W}, 12
    s_lshl_b32 s{S_C0}, s{S_I}, 19
    s_lshl_b32 s{S_T}, s{S_W}, 17
    s_add_u32 s{S_C0}, s{S_C0}, s{S_T}
    s_add_u32 s{S_C1}, s{S_C0}, {32*2048}
    s_lshl_b32 s{S_W0}, s{S_W}, 16
    s_lshl_b32 s{S_T}, s{S_H}, 9
    s_add_u32 s{S_W0}, s{S_W0}, s{S_T}
    s_add_u32 s{S_W1}, s{S_W0}, {32*8192}
    s_mov_b32 s{S_A+2}, 4194304
    s_mov_b32 s{S_A+3}, 0x20000
    s_mov_b32 s{S_B+2}, 8388608
    s_mov_b32 s{S_B+3}, 0x20000
    s_bitcmp1_b32 s2, 4
    s_waitcnt lgkmcnt(0)
    s_mov_b64 s[{S_A}:{S_A+1}], s[{PTR(B_CKV)}:{PTR(B_CKV)+1}]
    s_cselect_b64 s[{S_B}:{S_B+1}], s[{PTR(B_WUV)}:{PTR(B_WUV)+1}], s[{PTR(B_WUK)}:{PTR(B_WUK)+1}]
    """)
    pro = Asm()
    plain(pro, dmaC(0, 32768, 0, "c0") + dmaC(0, 32768, 1, "c0") + dmaW(SLOT_W[0], 0, "w0", c.opt.get("nt", " nt")) + dmaW(SLOT_W[0], 1, "w0", c.opt.get("nt", " nt")))
    srd(pro, S_WS, PTR(D_WS), 0x10000000)
    plain(pro, dmaC(32768, 32768, 0, "c1") + dmaC(32768, 32768, 1, "c1") + dmaW(SLOT_W[1], 0, "w1", c.opt.get("nt", " nt")))
    pro(f"s_mul_hi_u32 s{S_SB}, s2, {(1 << 32)//7 + 1}\ns_mul_i32 s{S_CB}, s{S_SB}, 7\ns_sub_u32 s{S_CB}, s2, s{S_CB}\nv_mov_b32 v246, 0\nv_mov_b32 v229, 0\nv_mov_b32 v231, 0")
    nz = 0 if c.opt.get("nopf") else 1
    DLY = c.opt.get("dly", 3)
    qa = [(B_WQ, 3670016), (A_SSMK, 1835008)]
    qb = [(B_X, 1835008), (B_WO, 3670016)]
    for k in range(2):
        d = S_PQ + 4*k
        pro(f"""
        s_cmp_eq_u32 s{S_W}, 3
        s_cselect_b64 s[{d}:{d+1}], s[{PTR(qb[k][0])}:{PTR(qb[k][0])+1}], s[{PTR(qa[k][0])}:{PTR(qa[k][0])+1}]
        s_cselect_b32 s{d+2}, {qb[k][1]*nz}, 0
        s_cmp_eq_u32 s{S_W}, 1
        s_cselect_b32 s{d+2}, {qa[k][1]*nz}, s{d+2}
        """)
    NL = c.opt.get('nl', 19)
    pro(f"""
    s_mov_b32 s{S_C+3}, 0x20000
    s_cmp_eq_u32 s{S_W}, 2
    s_cbranch_scc1 M_pf2
    s_cmp_lg_u32 s{S_W}, 0
    s_cbranch_scc1 M_pf3
    s_mov_b64 s[{S_C}:{S_C+1}], s[{S_B}:{S_B+1}]
    s_mov_b32 s{S_C+2}, {8*MB*nz}
    s_mov_b32 s{S_PL}, {8*MB}
    s_mov_b32 s{S_PS}, {MB//2}
    s_mov_b32 s{S_PO}, {MB}
    s_lshl_b32 s{S_T}, s{S_I}, 16
    s_lshl_b32 s{S_T2}, s{S_H}, 9
    s_add_u32 s{S_T}, s{S_T}, s{S_T2}
    v_lshrrev_b32 v26, 2, v29
    v_lshl_add_u32 v26, v26, 13, s{S_T}
    v_and_b32 v27, 3, v29
    v_lshl_add_u32 v{V_PF}, v27, 7, v26
    v_cmp_gt_u32 vcc, 32, v29
    v_mov_b32 v26, {INVALID}
    s_nop 0
    v_cndmask_b32 v{V_PF}, v26, v{V_PF}, vcc
    {PFLOAD}{c.opt.get("nt", " nt")}
    s_add_u32 s{S_PO}, s{S_PO}, s{S_PS}
    s_branch M_pfd
    M_pf2:
    s_mov_b64 s[{S_C}:{S_C+1}], s[{PTR(B_CKV)}:{PTR(B_CKV)+1}]
    s_mov_b32 s{S_C+2}, {4*MB*nz}
    s_mov_b32 s{S_PL}, 2048
    s_mov_b64 s[{S_PQ}:{S_PQ+1}], s[{PTR(A_Q)}:{PTR(A_Q)+1}]
    s_mov_b32 s{S_PQ+2}, {1835008*nz}
    s_mov_b32 s{S_PS}, 256
    s_mov_b32 s{S_PO}, 256
    s_lshl_b32 s{S_T}, s2, 14
    v_lshrrev_b32 v26, 1, v29
    v_lshl_add_u32 v26, v26, 11, s{S_T}
    v_and_b32 v27, 1, v29
    v_lshl_add_u32 v{V_PF}, v27, 7, v26
    v_cmp_gt_u32 vcc, 16, v29
    s_branch M_pfd
    M_pf3:
    s_mov_b64 s[{S_C}:{S_C+1}], s[{PTR(B_X)}:{PTR(B_X)+1}]
    s_mov_b32 s{S_C+2}, 0
    s_mov_b32 s{S_PL}, {(DLY + 1)*256*NL*128}
    s_mov_b32 s{S_PS}, {256*NL*128}
    s_mov_b32 s{S_PO}, 0
    s_mul_i32 s{S_T}, s2, {NL*128}
    v_lshl_add_u32 v{V_PF}, v29, 7, s{S_T}
    v_cmp_gt_u32 vcc, {NL}, v29
    M_pfd:
    v_mov_b32 v26, {INVALID}
    s_nop 0
    v_cndmask_b32 v{V_PF}, v26, v{V_PF}, vcc
    """)
    NT = c.opt.get("nt", " nt")
    for e in pf_loads(NT): pro(e)
    pro(f"s_add_u32 s{S_PO}, s{S_PO}, s{S_PS}")
    srd(pro, S_DBG, PTR(D_DBG), 256)
    pro(f"s_bfe_u32 s{S_SIG}, s2, 0x20003\ns_add_u32 s{S_SIG}, s{S_SIG}, 5")
    pro(f"""
    s_getpc_b64 s[{56}:{57}]
    M_pc:
    s_lshr_b32 s{S_T}, s2, 3
    s_lshl_b32 s{S_T}, s{S_T}, 5
    v_and_b32 v26, 31, v0
    v_add_u32 v26, s{S_T}, v26
    v_lshlrev_b32 v26, 7, v26
    v_min_u32 v26, M_end-M_pc, v26
    v_mov_b32 v27, s57
    v_add_co_u32 v26, vcc, s56, v26
    s_nop 1
    v_addc_co_u32 v27, vcc, 0, v27, vcc
    global_load_dword v{V_PD}, v[26:27], off
    """)
    pro(f"""
    v_and_b32 v30, 15, v29
    v_lshrrev_b32 v31, 4, v29
    v_lshrrev_b32 v26, 1, v30
    v_xor_b32 v26, v31, v26
    v_lshlrev_b32 v26, 4, v26
    v_lshl_add_u32 v{V_CB}, v30, 7, v26
    s_lshr_b32 s{S_T}, s{S_W}, 1
    s_lshl_b32 s{S_T}, s{S_T}, 14
    v_add_u32 v{V_CB}, s{S_T}, v{V_CB}
    v_xor_b32 v{V_CB+1}, 64, v{V_CB}
    v_lshrrev_b32 v26, 2, v30
    v_and_b32 v27, 1, v31
    v_lshl_or_b32 v27, v27, 2, v26
    v_lshl_add_u32 v26, v31, 3, v26
    v_lshlrev_b32 v26, 9, v26
    v_lshl_add_u32 v26, v27, 5, v26
    v_and_b32 v27, 3, v29
    v_lshl_add_u32 v26, v27, 3, v26
    s_and_b32 s{S_T}, s{S_W}, 1
    s_lshl_b32 s{S_T}, s{S_T}, 8
    s_add_u32 s{S_T}, s{S_T}, 0x10000
    v_xor_b32 v{V_WB}, s{S_T}, v26
    """)
    for j in range(1, 8): pro(f"v_xor_b32 v{V_WB+j}, {32*j}, v{V_WB}")
    pro(f"""
    s_lshr_b32 s{S_T}, s2, 4                  ; j = 2i+role
    s_lshl_b32 s{S_T2}, s{S_H}, 5
    s_add_u32 s{S_T2}, s{S_T2}, s{S_T}
    s_lshl_b32 s{S_T2}, s{S_T2}, 2            ; h*128 + j*4
    v_mov_b32 v28, {INVALID}
    v_writelane_b32 v28, s{S_T2}, 0
    s_add_u32 s{S_CNT}, s{S_T2}, {FL_Q}
    v_writelane_b32 v28, s{S_CNT}, 1
    s_add_u32 s{S_CNT}, s{S_T2}, {FL_PART}
    v_writelane_b32 v28, s{S_CNT}, 2
    s_sub_u32 s{S_QB}, 15, s{S_I}
    s_bitcmp1_b32 s2, 4
    s_cselect_b32 s{S_QB}, s{S_I}, s{S_QB}
    s_lshl_b32 s{S_CNT}, s{S_QB}, 5
    s_add_u32 s{S_CNT}, s{S_CNT}, s{S_H}
    s_lshl_b32 s{S_CNT}, s{S_CNT}, 2
    s_add_u32 s{S_CNT}, s{S_CNT}, {FL_CTX}
    v_writelane_b32 v28, s{S_CNT}, 3
    s_add_u32 s{S_CNT}, s{S_CNT}, 64
    v_writelane_b32 v28, s{S_CNT}, 6
    s_lshl_b32 s{S_CNT}, s2, 2
    s_add_u32 s{S_CNT}, s{S_CNT}, {FL_CONV}
    v_writelane_b32 v28, s{S_CNT}, 4
    s_lshl_b32 s{S_CNT}, s{S_CB}, 5
    s_add_u32 s{S_CNT}, s{S_CNT}, s{S_SB}
    s_lshl_b32 s{S_CNT}, s{S_CNT}, 2
    s_add_u32 s{S_CNT}, s{S_CNT}, {FL_PREP}
    s_cmp_lt_u32 s2, 224
    s_cselect_b32 s{S_CNT}, s{S_CNT}, {INVALID}
    v_writelane_b32 v28, s{S_CNT}, 7
    s_cmp_eq_u32 s{S_W}, 0
    s_cselect_b32 s{S_CNT}, {WS_FLAG}, {INVALID}
    buffer_store_dword v246, v28, s[{S_WS}:{S_WS+3}], s{S_CNT} offen sc1
    v_mov_b32 v{V_ONE}, 1
    v_cmp_eq_u32 vcc, 0, v0
    v_mov_b32 v{V_Z}, {INVALID}
    s_lshl_b32 s{S_OUT}, s{S_H}, 20
    s_lshl_b32 s{S_T}, s{S_I}, 17
    v_cndmask_b32 v{V_Z}, v{V_Z}, v246, vcc
    s_add_u32 s{S_OUT}, s{S_OUT}, s{S_T}
    s_lshr_b32 s{S_T}, s{S_W}, 1
    s_lshl_b32 s{S_T}, s{S_T}, 16
    s_add_u32 s{S_OUT}, s{S_OUT}, s{S_T}
    s_and_b32 s{S_T}, s{S_W}, 1
    s_waitcnt vmcnt(63) ; @need:c0,w0
    s_barrier
    """)
    for t in rdC(0, 32768, 0) + rdW(V_WB, 0, 0, SLOT_W[0]): pro(t)
    pro(("s_waitcnt lgkmcnt(0)" if TWOBAR else "s_waitcnt vmcnt(63) lgkmcnt(0) ; @need:c1") + "\ns_barrier")
    tmp = [l for l in pro.lines]
    i0 = next(i for i, l in enumerate(tmp) if "v21, v20" in l)
    tmp[i0] += " ; @skip"; fix_vm([tmp]); pro.lines[:] = tmp
    a(pro.text())
    c.ST(0, 28)
    if c.diag:
        a("v_writelane_b32 v31, s98, 0\ns_mov_b32 s100, 1"); diag_now(a)
    head = list(a.lines)
    a("s_bitcmp1_b32 s2, 4\ns_cbranch_scc1 M_V")
    Q = [body2(q) for q in range(7)]
    CNTL = f"buffer_load_dword v245, off, s[{S_DBG}:{S_DBG+3}], 0 sc1 ; @i:cnt"
    PPOLL = f"buffer_load_dword v230, v231, s[{S_WS}:{S_WS+3}], s52 offen sc1 ; @i:pp"
    NB15 = c.opt.get("nb15", 6)
    pace = c.opt.get("pace", [5, 5, 5, 5, 6])
    assert NB15 + pace[0] >= 9 and NB15 + sum(pace[:3]) <= 24
    p = NB15
    for q, cnt in enumerate(pace):
        for k in range(cnt):
            pre, st, post = kv_store(p)
            g0 = int(k * (60 if q < 6 else 24) / cnt)
            left, g = place_stream(Q[q], [st] + post, max(g0, gprev if k else 0), 63)
            Q[q].post += left
            gprev = g + 1
            p += 1
    assert p == 32
    left, _ = place_stream(Q[1], [o for p in range(24, 32) for o in kv_store(p)[0]], 0, 63)
    left, _ = place_stream(Q[2], left, 0, 50); assert not left
    addneed = lambda b, t: [b.S[47].__setitem__(i, Ins(y.text + "," + t)) for i, y in enumerate(b.S[47]) if y.kind == "wait"]
    left, _ = place_stream(Q[5], [f"s_lshl_b32 s{S_T}, s{S_H}, 7", f"s_add_u32 s{S_FHD}, s{S_T}, {WS_FLAG}", f"s_lshr_b32 s{S_T}, s2, 4", f"s_lshl_b32 s{S_T}, s{S_T}, 2",
                                  f"s_add_u32 s{S_FKV}, s{S_FHD}, s{S_T}"] + q_out_base(), 2); assert not left
    left, _ = place_stream(Q[5], [f"v_bfe_u32 v{V_PF}, v{V_L}, 4, 4", f"v_lshlrev_b32 v{V_PF}, 2, v{V_PF}"], 2); assert not left
    fstore = lambda x: f"buffer_store_dword v{V_ONE}, v{V_Z}, s[{S_WS}:{S_WS+3}], s{x} offen sc1"
    assert len(pace) <= 5
    addneed(Q[5], "kv"); Q[5].put(49, fstore(S_FKV))
    traces = []
    ool = Asm(); ool.nlabel = 9800
    for typ in ("K", "V"):
        if typ == "V": a("M_V:")
        n0 = len(a.lines)
        strides = [8192, 16384, 32768, 1024, 2048] if typ == "K" else [1024, 32768, 2048, 4096, 8192]
        a(f"s_lshl_b32 s{S_T}, s{S_T}, {12 if typ == 'K' else 14}\ns_add_u32 s{S_OUT}, s{S_OUT}, s{S_T}")
        if typ == "V": a(f"s_add_u32 s{S_OUT}, s{S_OUT}, {WS_V}")
        if c.opt.get("nost"): a(f"s_mov_b32 s{S_OUT}, {INVALID}")
        for k in range(5): a(f"s_mov_b32 s{S_DL+k}, {(strides[k] - sum(strides[:k])) & 0xffffffff}")
        a(f"s_mov_b32 s{S_CNT}, 8\ns_mov_b32 s{S_PB1}, {INVALID}")
        G0 = 48
        def std(t, first=False, pf=True, extra=""):
            pb = t & 1
            b = body1(t, typ, [dmaW(SLOT_W[pb ^ 1], 1, f"w{pb^1}", NT if first else ""), dmaC(SLOT_C[pb], 32768, 0, f"c{pb}"), dmaC(SLOT_C[pb], 32768, 1, f"c{pb}")],
                      [dmaW(SLOT_W[pb], 0, f"w{pb}")], (f"c{pb^1}", f"c{pb}"), f"w{pb^1}" + extra, first)
            b.gpf = G0
            if pf:
                left, b.gpf = place_stream(b, pf_loads(NT and first) + pf_shift(), G0); assert not left
            return b
        b0 = std(0, True)
        left, _ = place_stream(b0, pf_loads(NT) + pf_shift(), b0.gpf + 1, 110); assert not left
        l1, l2 = std(1), std(2)
        lab = a.label("Lg")
        for b in (l1, l2):
            left, _ = place_stream(b, [f"s_cmp_eq_u32 s{S_CNT}, s{S_SIG}", f"s_cselect_b32 s{S_T}, 0, {INVALID}", f"s_sub_u32 s{S_CNT}, s{S_CNT}, 1",
                                       f"buffer_atomic_add v{V_ONE}, v{V_Z}, s[{S_DBG}:{S_DBG+3}], s{S_T} offen sc1"], b.gpf + 1, 110); assert not left
        l2.post += [f"s_bitcmp1_b32 s{S_CNT}, 1", f"s_cbranch_scc1 {lab}", f"s_cmp_eq_u32 s{S_CNT}, 0", f"s_cbranch_scc1 {lab}t"]
        s7, s8, s9, s10 = std(7, pf=False), std(8), std(9), std(10, pf=False, extra=",cnt")
        side_a(s7, 47)
        left, g = place_stream(s8, sp(f"""
        s_lshl_b32 s59, s{S_CB}, 5
        s_add_u32 s59, s59, s{S_SB}
        s_lshl_b32 s59, s59, 2
        s_add_u32 s59, s59, {WS_FLAG + FL_PREP}
        s_cmp_lt_u32 s2, 224
        s_cselect_b32 s59, s59, {INVALID}
        """), s8.gpf + 1); assert not left
        left, _ = place_stream(s8, pf_loads("") + pf_shift(), g + 1, 110); assert not left
        A0, pc, wr = side_b(s9)
        left, g = place_stream(s8, A0, 100, 110); assert not left
        pc, _ = place_stream(s8, pc, 112)
        for i, e in enumerate(wr): s9.put(103 + 2*i, e)
        s9.place(s9.gpf + 1, CNTL)
        force_stream(s9, pc, 0, 101)
        left, g = place_stream(s9, sp(f"""
        s_lshr_b32 s{S_T}, s{S_W}, 1
        s_mul_i32 s{S_T}, s{S_T}, {WS_U1 - WS_U}
        s_and_b32 s{S_T2}, s{S_W}, 1
        s_lshl_b32 s{S_T2}, s{S_T2}, 5
        s_lshl_b32 s56, s{S_CB}, 6
        s_add_u32 s{S_T2}, s{S_T2}, s56
        s_mul_i32 s{S_T2}, s{S_T2}, {U_STRIDE}
        s_add_u32 s{S_T}, s{S_T}, s{S_T2}
        s_add_u32 s57, s{S_T}, {WS_U + 120}
        s_lshl_b32 s{S_T2}, s{S_SB}, 7
        s_add_u32 s{S_T}, s{S_T}, s{S_T2}
        s_add_u32 s56, s{S_T}, {WS_U + 128}
        s_cmp_lt_u32 s2, 224
        s_cselect_b32 s56, s56, {INVALID}
        s_cmp_eq_u32 s{S_SB}, 0
        s_cselect_b32 s57, s57, {INVALID}
        """), 84, 110); assert not left
        left, g = place_stream(s9, sp(f"""
        v_add_u32 v22, s{S_MW}, v{V_L}
        v_add_u32 v22, {EXL + 16384}, v22
        v_lshrrev_b32 v224, 7, v{V_L}
        v_mul_u32_u24 v224, {U_STRIDE}, v224
        v_and_b32 v225, 0x70, v{V_L}
        v_add_u32 v224, v224, v225
        v_bfe_u32 v225, v{V_L}, 4, 5
        v_mul_u32_u24 v225, {U_STRIDE}, v225
        v_mov_b32 v226, 0
        v_mov_b32 v227, 0
        """), 112); assert not left
        g = 8
        for k in range(4): g = s10.place(g, f"ds_read_b128 {ar(176 + 4*k, 4)}, v22 offset:{k*1024} ; @r:L9") + 1
        ust = [f"buffer_store_dwordx2 v[226:227], v225, s[{S_WS}:{S_WS+3}], s57 offen{SC}"]
        for k in range(4):
            ust += [f"buffer_store_dwordx4 {ar(176 + 4*k, 4)}, v224, s[{S_WS}:{S_WS+3}], s56 offen{SC}", f"s_add_u32 s56, s56, {8*U_STRIDE}"]
        for i, g in enumerate((49, 67, 85, 103)):
            left, _ = place_stream(s10, ust[1 + 2*i:3 + 2*i], g, 110); assert not left
        s10.place(3, ust[0])
        s10.place(113, f"v_cmp_gt_u32 vcc, 0x100, v245")
        s10.post += [f"s_mov_b32 s{S_PB1}, s59", f"s_cbranch_vccnz M_cntspin{typ}", f"s_branch {lab}"]
        ool(f"M_cntspin{typ}:"); spin(ool, [CNTL], [f"v_cmp_gt_u32 vcc, 0x100, v245"]); ool(f"s_branch {lab}")
        l1.put(127, fstore(S_PB1))
        b13 = std(13, pf=False)
        left, g13 = place_stream(b13, cdma_consts(896, 28) + [f"v_xor_b32 v{V_QB}, s44, v{V_WB}"] + [f"v_xor_b32 v{V_QB+j}, {32*j}, v{V_QB}" for j in range(1, 4)], 60); assert not left
        left, _ = place_stream(b13, [f"s_and_b32 s44, s{S_W}, 1", f"s_lshl_b32 s44, s44, 8", f"s_lshl_b32 s45, s{S_W}, 7", f"s_xor_b32 s44, s44, s45", f"s_xor_b32 s44, s44, {QSL[0] ^ 0x10000}"], 2, 46); assert not left
        left, _ = place_stream(b13, [f"s_mov_b64 s[{S_A}:{S_A+1}], s[{PTR(B_X)}:{PTR(B_X)+1}]", f"s_mov_b32 s{S_A+2}, 1835008",
                                     f"s_lshl_b32 s{S_C0}, s{S_QB}, 2", f"s_add_u32 s{S_C0}, s{S_C0}, s{S_W}", f"s_mul_i32 s{S_C0}, s{S_C0}, {32*896}",
                                     f"s_mov_b32 s{S_MC}, s{S_MW}"], 50); assert not left
        left, g = place_stream(s10, sp(f"""
        s_mul_i32 s52, s{S_H}, 7
        s_add_u32 s52, s52, s{S_I}
        s_lshl_b32 s53, s52, 2
        s_add_u32 s53, s53, s{S_W}
        s_lshl_b32 s49, s53, 12
        s_mul_i32 s53, s53, {U_STRIDE}
        s_add_u32 s53, s53, {WS_U}
        s_lshr_b32 s52, s52, 4
        s_min_u32 s52, s52, 6
        s_lshl_b32 s52, s52, 7
        s_add_u32 s52, s52, {WS_FLAG + FL_PREP}
        """), 2, 46); assert not left
        left, g = place_stream(s10, sp(f"""
        s_cmp_lt_u32 s{S_I}, {7 if typ == "V" and not c.opt.get("nocw") else 0}
        s_cselect_b32 s53, s53, {INVALID}
        s_cselect_b32 s49, s49, {INVALID}
        s_add_u32 s48, s53, {WS_U1 - WS_U}
        """), 54, 64); assert not left
        left, _ = place_stream(s10, sp(f"""
        v_bfe_u32 v231, v{V_L}, 4, 5
        v_lshlrev_b32 v231, 2, v231
        v_lshlrev_b32 v229, 3, v{V_L}
        v_min_u32 v229, 4096, v229
        """), 20, 60); assert not left
        b13.pre.append(PPOLL)
        b13.put(46, "s_waitcnt vmcnt(63) ; @need:pp")
        b13.put(47, f"v_cmp_gt_u32 vcc, 1, v230")
        b13.put(48, f"s_cbranch_vccnz M_ppspin{typ}"); b13.put(48, f"M_ppok{typ}:")
        ool(f"M_ppspin{typ}:"); spin(ool, [PPOLL], [f"v_cmp_gt_u32 vcc, 1, v230"]); ool(f"s_branch M_ppok{typ}")
        left, g = place_stream(b13, [f"s_mov_b64 s[56:57], s[{PTR(A_SSMK)}:{PTR(A_SSMK)+1}]", f"s_mov_b32 s58, 1835008", "s_mov_b32 s59, 0x20000"], 20, 46); assert not left
        left, g = place_stream(b13, [f"buffer_load_dword v230, v229, s[{S_WS}:{S_WS+3}], s53 offen sc1", f"buffer_load_dword v230, v229, s[{S_WS}:{S_WS+3}], s48 offen sc1",
                                     f"buffer_load_dword v230, v229, s[56:59], s49 offen", PFLOAD], 49, 70); assert not left
        sw = [f"s_mov_b64 s[{S_B}:{S_B+1}], s[{PTR(B_WQ)}:{PTR(B_WQ)+1}]", f"s_mov_b32 s{S_B+2}, 3670016",
              f"s_sub_u32 s{S_W0}, s{S_W0}, {1024*8192}", f"s_sub_u32 s{S_W1}, s{S_W1}, {1024*8192}"]
        b14 = body1(14, typ, [dmaW(SLOT_W[1], 1, "w1"), dmaC(XSL[0], 16384, 0, "x0") + sw[:2], dmaC(XSL[1], 16384, 0, "x1") + sw[2:],
                              dmaW(QSL[0], 0, "Wq0"), dmaW(QSL[0], 1, "Wq0")],
                    [dmaC(XSL[2], 16384, 0, "x2")], ("c1", "x0"), "w1")
        left, _ = place_stream(b14, [f"s_lshr_b32 s{S_T}, s{S_W}, 1", f"s_lshl_b32 s{S_T}, s{S_T}, 14",
                                     f"v_subrev_u32 v{V_CB}, s{S_T}, v{V_CB}", f"v_subrev_u32 v{V_CB+1}, s{S_T}, v{V_CB+1}"], 113); assert not left
        b15 = body1(15, typ, [dmaW(QSL[1], 0, "Wq1"), dmaW(QSL[1], 1, "Wq1"), dmaC(XSL[3], 16384, 0, "x3")],
                    [dmaW(QSL[2], 0, "Wq2")], ("x0", "x1"), "Wq0,x1",
                    nxt=(rdC(XSL[0], 16384, 0), rdW(V_QB, 0, 0, QSL[0])))
        b15.put(118, f"v_add_u32 v{V_QB}, {(QSL[1] - QSL[0]) & 0xffffffff}, v{V_QB}")
        sg = [41 + int(84*k/NB15) for k in range(NB15)]
        for k in range(NB15):
            pre, st, post = kv_store(k)
            left, g = place_stream(b15, [st] + post, sg[k], 127); assert not left
        g = 0
        for p in range(24):
            done = (32*(p >> 3) + 17 + 2*(p & 7)) if typ == "K" else (16*(p >> 2) + 4*(p & 3) + 3)
            left, g = place_stream(b15, cvt_pair(preg(p, 0)[1], preg(p, 1)[1]), max(g, done + 5), 127); assert not left
            if p < NB15: assert g < sg[p], (p, g)
        allb = (b0, l1, l2, s7, s8, s9, s10, b13, b14, b15)
        seq = [b0, l1, l2, l1, l2, s7, s8, s9, s10, l1, l2, l1, l2, b13, b14, b15]
        if c.diag:
            for b in allb: diag_body(b, 111)
            if typ == "K":
                for b in Q[:6]: diag_body(b, 47)
        fix_vm([list(pro.lines)] + seq + Q)
        insert_lgkm(seq + Q)
        pre_lines = a.lines[n0:]
        a("\n".join(b0.lines())); a(f"{lab}:"); a("\n".join(l1.lines() + l2.lines()))
        for b in (s7, s8, s9, s10): a("\n".join(b.lines()))
        a(f"{lab}t:")
        for b in (b13, b14, b15): a("\n".join(b.lines()))
        if typ == "K": a("s_branch M_Q")
        traces.append((pre_lines, seq))
        print(typ, "overflow", [b.over() for b in allb])
    a("M_Q:")
    c.ST(1, 8)
    for q in range(6): a("\n".join(Q[q].lines()))
    print("Q overflow", [b.over() for b in Q])
    spin_text = ool.text()
    tr = [head + pl + [l for b in bs + Q[:6] for l in b.lines()] for pl, bs in traces]
    return dict(traces=tr, q6=Q[6], ool=spin_text)

S_QO = 67
S_QS = 68
KVPOLL = f"buffer_load_dword v{V_PD}, v{V_PF}, s[{S_WS}:{S_WS+3}], s{S_FHD} offen sc1 ; @i:kvp"
def q_pack(tp, ci, pk=True):
    L = []
    ra = acc2(2*tp, ci)[1]; k, rb = acc2(2*tp + 1, ci)
    if k == "a":
        t = preg(ci + 8, 0)[1]
        L += [f"v_accvgpr_read_b32 v{t+i}, a{rb+i}" for i in range(4)]; rb = t
    if pk:
        for r in (ra, ra + 2, rb, rb + 2): L.append(f"v_pk_mul_f32 {vr(r, 2)}, {vr(r, 2)}, s[{S_QS}:{S_QS+1}]")
    else:
        for r in list(range(ra, ra + 4)) + list(range(rb, rb + 4)): L.append(f"v_mul_f32 v{r}, s{S_QS}, v{r}")
    return L + cvt_pair(ra, rb)
def q_store(tp, ci, flags):
    return [f"s_add_u32 s{S_T2}, s{S_QO}, {ci*8192}",
            f"buffer_store_dwordx4 {vr(acc2(2*tp, ci)[1], 4)}, v{V_L}, s[{S_WS}:{S_WS+3}], s{S_T2} offen offset:{tp*1024}{flags} ; @i:q"]
def q_lds(tp, ci): return f"ds_write_b128 v28, {vr(acc2(2*tp, ci)[1], 4)} offset:{ci*8192 + tp*1024} ; {tags('w', 65536, 65536)}"
def q_lds_addr(): return [f"v_lshrrev_b32 v28, 6, v0", f"v_lshl_add_u32 v28, v28, 11, v{V_L}", f"v_add_u32 v28, 65536, v28"]
def q_early(b, g0, flags=None):
    import copy
    n = 0; g = g0
    for ci in range(8):
        ops = q_pack(0, ci, False); st = q_store(0, ci, flags) if flags is not None else []
        def go(t):
            left, g2 = place_stream(t, ops, max(g, 16 + 2*ci + 1 + 5), 63)
            if left: return None
            if st:
                left, g3 = place_stream(t, [q_lds(0, ci)], g2 + 1, 63)
                left2, g4 = place_stream(t, st[1:], g2 + 1, 63)
                if left or left2: return None
                t.put(g4, st[0])
            return g2
        if go(copy.deepcopy(b)) is None: break
        g = go(b); n += 1
    return n
def q_epilogue(to_lds, to_mem, flags, done=0):
    L = []
    for tp in range(2):
        for ci in range(8):
            if tp*8 + ci < done: continue
            L += q_pack(tp, ci)
            if to_lds: L.append(q_lds(tp, ci))
            if to_mem: L += q_store(tp, ci, flags)
    return L
def q_out_base():
    return [f"s_lshl_b32 s{S_QO}, s{S_H}, 20", f"s_lshl_b32 s{S_T}, s{S_QB}, 16", f"s_add_u32 s{S_QO}, s{S_QO}, s{S_T}",
            f"s_lshl_b32 s{S_T}, s{S_W}, 11", f"s_add_u32 s{S_QO}, s{S_QO}, s{S_T}", f"s_add_u32 s{S_QO}, s{S_QO}, {WS_Q}",
            f"s_mov_b32 s{S_QS}, {QSCALE}", f"s_mov_b32 s{S_QS+1}, {QSCALE}"]

if __name__ == "__main__":
  import sys
  for name, opt in (("p12", {}), ("p12_tb0", {"tb": 0}), ("p12_d2", {"dly": 2}), ("p12_nl", {"nl": 20})):
    KVSC = opt.get("kv", SC)
    c = Ctx(False); a = c.a; c.diag = True; c.opt = opt
    r = gen_p12(c)
    n0 = len(a.lines)
    a("\n".join(r["q6"].lines()))
    diag_now(a)
    a("\n".join(q_lds_addr() + q_epilogue(True, True, SC)))
    diag_now(a)
    a("s_waitcnt vmcnt(0)")
    diag_now(a); diag_dump(a)
    tail = a.lines[n0:]
    a("s_endpgm"); a(r["ool"]); a("M_end:\ns_endpgm")
    for t in r["traces"]: check_trace(t + tail, "P12")
    open(f"work/{name}.s", "w").write(file_text([(KN, a.text(), 256, 256, 163840, 512, 256)]))
```

```python
from mcommon import *
import att

CBASE = 131072 - 4*21248
SET = 21248
def ctags(k): return " ".join(f"@{k}:L{o}" for o in range(2, 8))
S_U0, S_HO, S_CM, S_CH, S_D = 82, 83, 84, 85, 79
S_CV = 60

def conv_setup():
    return f"""
    s_mul_i32 s{S_CH}, s{S_H}, 7
    s_add_u32 s{S_CH}, s{S_CH}, s{S_I}
    s_lshl_b32 s{S_CH}, s{S_CH}, 2
    s_add_u32 s{S_CH}, s{S_CH}, s{S_W}
    s_mul_i32 s{S_U0}, s{S_CH}, {U_STRIDE}
    s_add_u32 s{S_U0}, s{S_U0}, {WS_U + 128}
    s_lshl_b32 s{S_HO}, s{S_CH}, 12
    s_mul_i32 s{S_CM}, s{S_W}, {SET}
    s_add_u32 s{S_CM}, s{S_CM}, {CBASE}
    s_mov_b64 s[{S_CV}:{S_CV+1}], s[{PTR(A_SSMK)}:{PTR(A_SSMK)+1}]
    s_mov_b32 s{S_CV+2}, 1835008
    """.strip().split("\n")
def conv_dma():
    L = [f"s_add_u32 m0, s{S_CM}, {16640 + 512}"]
    L += [f"buffer_load_dwordx4 v{V_L}, s[{S_CV}:{S_CV+3}], s{S_HO} offen offset:{j*1024} lds" for j in range(4)]
    for r in range(4):
        L += [f"s_add_u32 m0, s{S_CM}, {r*4160 + 64}"]
        L += [f"buffer_load_dwordx4 v{V_L}, s[{S_WS}:{S_WS+3}], s{S_U0} offen offset:{j*1024}{SC} lds" for j in range(4)]
        if r < 3: L.append(f"s_add_u32 s{S_U0}, s{S_U0}, {(WS_U1 - WS_U) if r != 1 else ((WS_U - WS_U1 - 4) & 0xffffffff)}")
    return L

def conv_dload():
    return [f"s_mov_b64 s[{S_CV}:{S_CV+1}], s[{PTR(A_SSMD)}:{PTR(A_SSMD)+1}]", f"s_mov_b32 s{S_CV+2}, 896", f"s_lshl_b32 s{S_D}, s{S_CH}, 1",
            f"buffer_load_short_d16_hi v19, off, s[{S_CV}:{S_CV+3}], s{S_D}"]
def gen_conv(c, streams):
    V_A, V_B, V_KV = 16, 17, 18
    ACC = lambda t: 32 + 8*t
    KV = lambda t: 96 + 2*t
    AF = lambda buf, x: 128 + (buf*16 + x)*4
    BF = lambda buf, x: 128 + (buf*16 + 8 + x)*4
    a = Asm()
    a(f"""
    v_lshrrev_b32 v9, 4, v{V_L}
    v_and_b32 v10, 15, v9
    v_lshrrev_b32 v11, 4, v9
    v_lshrrev_b32 v12, 2, v10
    v_mul_u32_u24 v12, 4160, v12
    v_and_b32 v13, 3, v9
    v_lshl_add_u32 v12, v13, 3, v12
    v_lshlrev_b32 v13, 4, v11
    v_sub_u32 v12, v12, v13
    v_add_u32 v12, {64 + 32 - 8}, v12
    v_add_u32 v{V_A}, s{S_CM}, v12
    v_lshl_add_u32 v12, v10, 5, v13
    v_add_u32 v12, {16640 + 512 - 32 - 448}, v12
    v_add_u32 v{V_B}, s{S_CM}, v12
    v_lshlrev_b32 v12, 5, v10
    v_lshl_add_u32 v8, v11, 3, v12
    v_add3_u32 v{V_KV}, s{S_CM}, 64, v8
    v_mov_b32 v19, 0
    v_mov_b32 v12, 0
    v_mov_b32 v13, 0
    v_lshl_add_u32 v14, v9, 3, s{S_CM}
    ds_write_b64 v14, v[12:13] offset:16640
    v_mul_u32_u24 v14, 4160, v11
    v_lshl_add_u32 v14, v10, 2, v14
    v_add_u32 v14, s{S_CM}, v14
    ds_write_b32 v14, v12
    s_lshl_b32 s{S_HO}, s{S_CH}, 12
    s_add_u32 s{S_HO}, s{S_HO}, {WS_Z}
    """)
    def rdf(p):
        L = []
        for x in range(8):
            L.append(f"ds_read_b64_tr_b16 {ar(AF(p & 1, x), 2)}, v{V_A} offset:{512*x + 64*p + 8}")
            L.append(f"ds_read_b64_tr_b16 {ar(AF(p & 1, x) + 2, 2)}, v{V_A} offset:{512*x + 64*p}")
            L.append(f"ds_read_b128 {ar(BF(p & 1, x), 4)}, v{V_B} offset:{512*x + 64*(7 - p)}")
        return L
    def fin(t):
        L = []
        for x in range(4):
            kv = KV(t) + (x >> 1); tm = 10 + x
            L.append(f"v_lshlrev_b32 v{tm}, 16, v{kv}" if x % 2 == 0 else f"v_and_b32 v{tm}, 0xffff0000, v{kv}")
            L.append(f"v_fmac_f32 v{ACC(t)+x}, v19, v{tm}")
        L += [f"v_cvt_pk_bf16_f32 v{ACC(t)}, v{ACC(t)}, v{ACC(t)+1}", f"v_cvt_pk_bf16_f32 v{ACC(t)+1}, v{ACC(t)+2}, v{ACC(t)+3}",
              f"buffer_store_dwordx2 {vr(ACC(t), 2)}, v8, s[{S_WS}:{S_WS+3}], s{S_HO} offen offset:{512*t}{SC} ; @i:z"]
        return L
    ms = []
    for p in range(8):
        for t in range(8):
            for x in range(t + 1):
                d = vr(ACC(t), 4)
                ms.append(f"v_mfma_f32_16x16x32_bf16 {d}, {ar(AF(p & 1, x), 4)}, {ar(BF(p & 1, t - x), 4)}, {'0' if p == 0 and x == 0 else d}")
    SPL = c.opt.get('spl', 4)
    b1 = Body(ms[:36*SPL]); b2 = Body(ms[36*SPL:])
    b1.pre += ["s_waitcnt vmcnt(63) ; @need:cv"] + rdf(0)
    for p in range(7):
        b, g = (b1, 36*p) if p < SPL else (b2, 36*(p - SPL))
        for i, t in enumerate(rdf(p + 1)): g = b.place(g, t) + 1 + (i % 3 == 2)
        if p == 5:
            g = 36*(p if p < SPL else p - SPL)
            for t in range(8): g = b.place(g, f"ds_read_b64 {vr(KV(t), 2)}, v{V_KV} offset:{512*t}") + 1
    streams(b1, b2)
    o = 36*(7 - SPL); g = o; tl = []
    for t in range(8):
        end = o + (t + 1)*(t + 2)//2 - 1
        if tl or end + 8 > o + 35: tl += fin(t); continue
        left, g = place_stream(b2, fin(t), max(g, end + 8), o + 35)
        tl += left
    b2.post += (["s_nop 7"] if len(tl) <= 11 else []) + tl
    insert_lgkm([b1, b2])
    return a.lines, b1, b2

S_RB, S_CB = att.S_ORB, att.S_OCB
RPOLL = lambda st: f"buffer_load_dword v18, v19, s[{S_WS}:{S_WS+3}], s33 offen offset:{64*st} sc1"
def op_hook(ops):
    L = f"""
    s_lshl_b32 s34, s{att.S_QB}, 5
    s_add_u32 s34, s34, s{S_H}
    s_lshl_b32 s34, s34, 2
    s_add_u32 s34, s34, {WS_FLAG + FL_CTX}
    s_add_u32 s35, s34, 64
    s_lshr_b32 s{S_T}, s2, 3
    s_add_u32 s{S_T2}, s{S_T}, 4
    s_lshr_b32 s{S_T2}, s{S_T2}, 5
    s_lshl_b32 s{S_T2}, s{S_T2}, 1
    s_sub_u32 s{S_T}, s{S_T}, s{S_T2}
    s_lshr_b32 s{S_CB}, s{S_T}, 2
    s_and_b32 s{S_T}, s{S_T}, 3
    s_and_b32 s{S_RB}, s2, 7
    s_lshl_b32 s{S_RB}, s{S_RB}, 2
    s_add_u32 s{S_RB}, s{S_RB}, s{S_T}
    s_lshl_b32 s{S_T}, s{S_RB}, 2
    s_add_u32 s{S_T}, s{S_T}, s{S_W}
    s_mul_i32 s25, s{S_T}, {16*1792}
    s_lshl_b32 s{S_T2}, s{S_CB}, 6
    s_add_u32 s25, s25, s{S_T2}
    s_mul_i32 s26, s{S_T}, {16*14*1024}
    s_lshl_b32 s{S_T2}, s{S_CB}, 10
    s_add_u32 s26, s26, s{S_T2}
    s_add_u32 s26, s26, {WS_OP}
    s_lshr_b32 s{S_T}, s{S_RB}, 1
    s_lshl_b32 s{S_T}, s{S_T}, 7
    s_add_u32 s33, s{S_T}, {WS_FLAG + FL_CTX}
    s_mov_b64 s[40:41], s[{PTR(D_OUT)}:{PTR(D_OUT)+1}]
    s_mov_b32 s42, {2048*1792}
    s_mov_b32 s43, 0x20000
    """.strip().split("\n")
    left, _ = place_stream(ops[1], L, 0); assert not left
    L = f"""
    v_lshrrev_b32 v20, 4, v{V_L}
    v_and_b32 v19, 15, v20
    v_mul_u32_u24 v21, 1792, v19
    v_lshlrev_b32 v19, 2, v19
    v_lshrrev_b32 v22, 4, v20
    v_lshl_add_u32 v21, v22, 3, v21
    """.strip().split("\n")
    left, _ = place_stream(ops[1], L, 20); assert not left
    ops[6].put(28, RPOLL(0) + " ; @i:rp")
def gen_reduce(c):
    a = c.a
    n0 = len(a.lines)
    p = Asm(); p.nlabel = 9200
    def loads(q):
        if q: p(f"s_sub_u32 s26, s26, {15*14*1024 - 7*1024}")
        for h in range(16):
            p(f"buffer_load_dwordx4 {vr(128 + (16*q + h)*4, 4)}, v{V_L}, s[{S_WS}:{S_WS+3}], s26 offen{SC}")
            if h < 15: p(f"s_add_u32 s26, s26, {14*1024}")
    def sums(q, wait):
        A = 96 + q*8
        for h in range(16):
            if wait is not None: p(f"s_waitcnt vmcnt({15 - h + wait})")
            for i in range(4):
                r = 128 + (16*q + h)*4 + i
                d = A + 2*i if h == 0 else 10 + 2*i
                p(f"v_lshlrev_b32 v{d}, 16, v{r}\nv_and_b32 v{d+1}, 0xffff0000, v{r}")
            if h:
                for i in range(4): p(f"v_pk_add_f32 {vr(A + 2*i, 2)}, {vr(A + 2*i, 2)}, {vr(10 + 2*i, 2)}")
        for i in range(4): p(f"v_cvt_pk_bf16_f32 v{A + i}, v{A + 2*i}, v{A + 1 + 2*i}")
        for e in range(2): p(f"buffer_store_dwordx2 {vr(A + 2*e, 2)}, v21, s[40:43], s25 offen offset:{896 + q*448 + 32*e}")
    p("s_waitcnt vmcnt(4)\nv_cmp_gt_u32 vcc, 1, v18\ns_cbranch_vccnz M_rslow")
    loads(0)
    p("s_waitcnt vmcnt(16)\ns_barrier")
    p(att.flag_store(35))
    p("M_rjoin:")
    if c.stamps: stamp(p, 11, 2, S_WS, vt=28, st=S_ST)
    spin(p, [RPOLL(1)], ["v_cmp_gt_u32 vcc, 1, v18"])
    if c.stamps: stamp(p, 8, 2, S_WS, vt=28, st=S_ST)
    loads(1)
    sums(0, None)
    sums(1, 2)
    a(p.text())
    main = a.lines[n0:]
    p = Asm(); p.nlabel = 9250
    p("M_rslow:\ns_waitcnt vmcnt(0)\ns_barrier")
    p(att.flag_store(35))
    spin(p, [RPOLL(0)], ["v_cmp_gt_u32 vcc, 1, v18"])
    loads(0)
    p("s_branch M_rjoin")
    return main, p

def gen_final(c):
    a = Asm(); a.nlabel = 9300
    S_SB = 24
    srd(a, S_A, PTR(A_Q), 1835008); srd(a, S_B, PTR(D_OUT), 2048*1792)
    a(f"""
    s_and_b32 s{S_SB}, s2, 7
    s_lshl_b32 s{S_SB}, s{S_SB}, 2
    s_bfe_u32 s{S_T}, s2, 0x10003
    s_add_u32 s{S_SB}, s{S_SB}, s{S_T}
    s_bfe_u32 s{S_T}, s2, 0x10005
    s_lshl_b32 s{S_T}, s{S_T}, 1
    s_add_u32 s{S_SB}, s{S_SB}, s{S_T}
    v_lshrrev_b32 v20, 4, v{V_L}
    v_and_b32 v21, 15, v20
    v_lshrrev_b32 v22, 4, v20
    v_mul_u32_u24 v2, 896, v21
    v_lshlrev_b32 v9, 1, v2
    v_lshl_add_u32 v2, v22, 4, v2
    v_lshl_add_u32 v9, v22, 4, v9
    s_lshl_b32 s{S_T}, s{S_SB}, 2
    s_add_u32 s{S_T}, s{S_T}, s{S_W}
    s_mul_i32 s25, s{S_T}, {16*896}
    s_lshl_b32 s26, s25, 1
    """)
    a(f"""
    v_lshlrev_b32 v10, 5, v22
    v_add3_u32 v10, v10, v21, 16
    v_lshlrev_b32 v10, 2, v10
    v_min_u32 v11, {(2*32 + 31)*4}, v10
    v_add_u32 v11, 512, v11
    s_mov_b32 s27, {WS_FLAG + FL_CONV}
    Lfp:
    buffer_load_dword v3, v10, s[{S_WS}:{S_WS+3}], s27 offen sc1
    buffer_load_dword v4, v11, s[{S_WS}:{S_WS+3}], s27 offen sc1
    s_waitcnt vmcnt(0)
    v_and_b32 v3, v3, v4
    v_cmp_gt_u32 vcc, 1, v3
    s_cbranch_vccz Lfpd
    s_sleep 2
    s_sub_u32 s101, s101, 1
    s_cbranch_scc0 Lfp
    s_mov_b32 s101, 0
    Lfpd:
    s_barrier
    {att.flag_store(35)}
    v_lshrrev_b32 v3, 3, v20
    v_and_b32 v4, 7, v20
    v_lshlrev_b32 v4, 4, v4
    v_lshl_add_u32 v3, v3, 12, v4
    s_mul_i32 s27, s{S_W}, {14*8*4096}
    s_lshl_b32 s{S_T}, s{S_SB}, 7
    s_add_u32 s27, s27, s{S_T}
    s_add_u32 s27, s27, {WS_Z}
    s_mul_i32 s28, s{S_W}, {14*1024}
    """)
    for j in range(14):
        a(f"s_add_u32 m0, s28, {j*1024}\ns_nop 0\nbuffer_load_dwordx4 v3, s[{S_WS}:{S_WS+3}], s27 offen{SC} lds\ns_add_u32 s27, s27, {8*4096}")
    for j in range(14): a(f"buffer_load_dwordx4 {vr(160 + 4*j, 4)}, v2, s[{S_A}:{S_A+3}], s25 offen offset:{j*64}")
    a(f"""
    v_lshrrev_b32 v3, 2, v21
    v_lshl_add_u32 v3, v22, 3, v3
    v_lshlrev_b32 v3, 7, v3
    v_and_b32 v4, 3, v20
    v_lshl_add_u32 v3, v4, 3, v3
    s_lshl_b32 s{S_T}, s{S_W}, 5
    v_add_u32 v3, s{S_T}, v3
    s_waitcnt vmcnt(14)
    s_barrier
    """)
    for j in range(14):
        for jj in range(2): a(f"ds_read_b64_tr_b16 {vr(96 + 4*j + 2*jj, 2)}, v3 offset:{j*4096 + jj*512}")
        if j == 6: a("s_waitcnt lgkmcnt(0)")
    for j in range(14):
        if j == 7: a("s_waitcnt lgkmcnt(0)")
        a("s_waitcnt vmcnt(13)")
        for i in range(4):
            q, z = 160 + 4*j + i, 96 + 4*j + i
            a(f"""
            v_lshlrev_b32 v10, 16, v{q}
            v_and_b32 v11, 0xffff0000, v{q}
            v_lshlrev_b32 v12, 16, v{z}
            v_and_b32 v13, 0xffff0000, v{z}
            v_pk_mul_f32 v[10:11], v[10:11], v[12:13]
            v_cvt_pk_bf16_f32 v{q}, v10, v11
            """)
        a(f"buffer_store_dwordx4 {vr(160 + 4*j, 4)}, v9, s[{S_B}:{S_B+3}], s26 offen offset:{j*64}")
    return a
```

```python
import re

_REG = re.compile(r"^-?(?:abs\(|\|)?([vas])(?:(\d+)|\[(\d+):(\d+)\])(?:\)|\|)?$")
TRANS = ("v_exp_f32", "v_log_f32", "v_rcp_f32", "v_rsq_f32", "v_sqrt_f32", "v_sin_f32", "v_cos_f32")

def regs_of(op):
    op = op.strip()
    m = _REG.match(op)
    if m:
        k = m.group(1)
        if m.group(2) is not None:
            return [(k, int(m.group(2)))]
        return [(k, i) for i in range(int(m.group(3)), int(m.group(4)) + 1)]
    if op in ("vcc", "vcc_lo", "vcc_hi"): return [("x", "vcc")]
    if op in ("exec", "exec_lo", "exec_hi"): return [("x", "exec")]
    if op == "m0": return [("x", "m0")]
    return []

class Ins:
    __slots__ = ("text", "mn", "kind", "rd", "wr", "ops", "tagr", "tagw", "c", "d", "ab", "nop")
    def __init__(self, text):
        self.text = text
        body, _, com = text.partition(";")
        body = body.strip()
        self.tagr = re.findall(r"@r:(\w+)", com); self.tagw = re.findall(r"@w:(\w+)", com)
        self.rd = []; self.wr = []; self.c = self.d = self.ab = None; self.nop = 1
        if not body or body.endswith(":") or body.startswith("."):
            self.mn = ""; self.kind = "none"; self.ops = []; self.nop = 0; return
        mn, _, rest = body.partition(" ")
        self.mn = mn
        ops = [o.strip() for o in rest.split(",")] if rest.strip() else []
        if ops:
            last = ops[-1].split()
            mods = last[1:]; ops[-1] = last[0]
        else:
            mods = []
        self.ops = ops
        R = [regs_of(o) for o in ops]
        flat = lambda l: [r for x in l for r in x]
        if mn.startswith("v_mfma"):
            self.kind = "mfma"; self.wr = R[0]; self.rd = flat(R[1:]); self.d = R[0]; self.c = R[3]; self.ab = R[1] + R[2]
        elif mn.startswith("ds_read") or mn.startswith("ds_bpermute") or mn.startswith("ds_swizzle"):
            self.kind = "dsr"; self.wr = R[0]; self.rd = flat(R[1:])
        elif mn.startswith("ds_"):
            self.kind = "dsw"; self.rd = flat(R)
        elif mn.startswith("buffer_load") and "lds" in mods:
            self.kind = "dma"; self.rd = flat(R) + [("x", "m0")]
        elif mn.startswith("buffer_load") or mn.startswith("global_load"):
            self.kind = "vld"; self.wr = R[0]; self.rd = flat(R[1:])
            if "d16" in mn: self.rd = self.rd + R[0]
        elif mn.startswith("buffer_store") or mn.startswith("global_store"):
            self.kind = "vst"; self.rd = flat(R)
        elif mn.startswith("buffer_atomic") or mn.startswith("global_atomic"):
            self.kind = "vst"; self.rd = flat(R)
            if "sc0" in mods: self.kind = "vld"; self.wr = R[0]
        elif mn in ("buffer_inv", "buffer_wbl2"):
            self.kind = "vst"
        elif mn.startswith("s_load") or mn in ("s_memtime", "s_memrealtime"):
            self.kind = "smem"; self.wr = R[0]; self.rd = flat(R[1:])
        elif mn == "s_waitcnt":
            self.kind = "wait"
        elif mn == "s_barrier":
            self.kind = "bar"
        elif mn == "s_nop":
            self.kind = "nop"; self.nop = int(ops[0], 0) + 1
        elif mn.startswith("s_cbranch") or mn in ("s_branch", "s_endpgm", "s_sleep", "s_setprio", "s_call_b64", "s_setpc_b64"):
            self.kind = "ctl"
            if "vcc" in mn: self.rd = [("x", "vcc")]
        elif mn.startswith("s_cmp") or mn.startswith("s_bitcmp"):
            self.kind = "salu"; self.rd = flat(R)
        elif mn.startswith("s_"):
            self.kind = "salu"; self.wr = R[0]; self.rd = flat(R[1:])
            if "saveexec" in mn: self.wr = self.wr + [("x", "exec")]
        elif mn.startswith("v_permlane") and "swap" in mn:
            self.kind = "valu"; self.wr = flat(R); self.rd = flat(R)
        elif mn.startswith("v_"):
            self.kind = "valu"; self.wr = R[0]; self.rd = flat(R[1:])
            if mn.startswith(("v_fmac", "v_writelane", "v_dot2c")) or "dpp" in mn or "sdwa" in mn: self.rd = self.rd + R[0]
            if mn.startswith(("v_add_co", "v_sub_co", "v_addc_co", "v_subb_co")): self.wr = R[0] + R[1]; self.rd = flat(R[2:])
        else:
            raise ValueError("unparsed: " + text)
    def is_trans(self): return self.mn.startswith(TRANS)

def parse(lines):
    return [Ins(l) for l in lines]

def wait_counts(text):
    vm = re.search(r"vmcnt\((\d+)\)", text); lg = re.search(r"lgkmcnt\((\d+)\)", text)
    return (int(vm.group(1)) if vm else None, int(lg.group(1)) if lg else None)

def check_trace(lines, name="", verbose=True):
    ins = parse([l for l in lines if "@skip" not in l])
    probs = []
    pos = 0
    lastw = {}
    lastc = {}
    lastst = {}
    lg = []; vm = []
    pend = {}
    wstate = {}
    rstate = {}
    scc = ['s_cmp']
    def P(i, msg): probs.append(f"{name}[{i}] {ins[i].text.strip()} :: {msg}")
    for i, x in enumerate(ins):
        if x.kind == "none": continue
        if x.kind == "wait":
            v, l = wait_counts(x.text)
            if v is not None:
                while len(vm) > v:
                    e = vm.pop(0); e["done"] = True
            if l is not None:
                if any(e["i"].kind == "smem" for e in lg) and l != 0:
                    pass
                else:
                    while len(lg) > l:
                        e = lg.pop(0); e["done"] = True
        if x.kind == "bar":
            for st in (wstate, rstate):
                for t in st:
                    st[t] = [e for e in st[t] if not e["done"]]
        if x.mn.startswith("s_cselect") or (x.mn.startswith("s_cbranch_scc") and "s101" not in scc[0]):
            if not scc[0].startswith(("s_cmp", "s_bitcmp")): P(i, f"SCC comes from {scc[0]}")
        if x.kind == "salu" and not x.mn.startswith(("s_mov", "s_cselect", "s_mul", "s_getpc", "s_getreg")): scc[0] = x.text.strip()
        for r in x.rd + x.wr:
            e = pend.get(r)
            if e and not e["done"]:
                if r in x.wr and r not in x.rd and x.kind == e["i"].kind:
                    continue
                P(i, f"{r} has outstanding load: {e['i'].text.strip()}")
                break
        def dist(p): return pos - p - 1
        for r in x.rd:
            w = lastw.get(r)
            if not w: continue
            p, k, wi = w
            need = 0
            if k == "mfma":
                if x.kind == "mfma":
                    if r in x.ab: need = 8 if "16x16" in wi.mn else 12
                    elif x.c == wi.d and x.mn == wi.mn: need = 0
                    else: need = 6 if "16x16" in wi.mn else 10
                else: need = 8 if "16x16" in wi.mn else 12
            elif k == "valu":
                if r[0] in "va":
                    if x.kind == "mfma": need = 2
                    elif x.mn.startswith("v_permlane") or "dpp" in x.mn: need = 2
                    elif x.mn.startswith(("v_readlane", "v_readfirstlane")): need = 1
                    elif wi.is_trans() and x.kind == "valu" and not x.is_trans(): need = 1
                    elif wi.is_trans(): need = 1
                else:
                    if x.kind == "valu": need = 2
                    elif x.kind in ("vld", "vst", "dma"): need = 5
            elif k == "salu":
                if r == ("x", "m0") and x.kind == "dma": need = 1
            if dist(p) < need: P(i, f"RAW hazard on {r}: dist {dist(p)} < {need} after {wi.text.strip()}"); break
        for r in x.wr:
            w = lastw.get(r)
            if w and w[1] == "mfma" and x.kind != "mfma":
                need = 8 if "16x16" in w[2].mn else 12
                if dist(w[0]) < need: P(i, f"WAW hazard on {r} after {w[2].text.strip()}"); break
            if w and w[1] == "mfma" and x.kind == "mfma" and not (x.c == w[2].d):
                pass
            if x.kind == "valu":
                p = lastc.get(r)
                if p is not None and dist(p[0]) < p[1]: P(i, f"WAR on SrcC {r}"); break
            if x.kind != "mfma":
                p = lastst.get(r)
                if p is not None and dist(p) < 2: P(i, f"WAR on store data {r}"); break
        for t in x.tagr:
            if wstate.get(t): P(i, f"LDS RAW: slot {t} has unfenced writes")
        for t in x.tagw:
            if rstate.get(t): P(i, f"LDS WAR: slot {t} has unfenced reads")
        e = None
        if x.kind in ("dsr", "dsw", "smem"):
            e = {"i": x, "done": False}; lg.append(e)
            if x.kind == "smem" and len(x.wr) > 1: lg.append({"i": x, "done": False})
        elif x.kind in ("vld", "vst", "dma"):
            e = {"i": x, "done": False}; vm.append(e)
            if len(vm) > 63: P(i, "more than 63 vm outstanding (counter saturates/stalls)")
        if e is not None:
            for r in x.wr: pend[r] = e
            for t in x.tagr: rstate.setdefault(t, []).append(e)
            for t in x.tagw: wstate.setdefault(t, []).append(e)
        for r in x.wr:
            lastw[r] = (pos + x.nop - 1, x.kind, x)
        if x.kind == "mfma":
            for r in x.c: lastc[r] = (pos, 3 if "16x16" in x.mn else 7)
        if x.kind == "vst" and ("x4" in x.mn or "x3" in x.mn):
            for r in regs_of(x.ops[0] if x.mn.startswith("buffer") else x.ops[1]): lastst[r] = pos
        pos += x.nop
    if verbose:
        for p in probs[:40]: print("HAZ", p)
    return probs

def vcost(x):
    if x.kind in ("dma", "vld", "vst"): return 2
    if x.kind == "valu" and x.is_trans(): return 2
    return 1

class Body:
    def __init__(self, mfmas):
        self.m = list(mfmas); n = len(self.m)
        self.S = [[] for _ in range(n)]
        self.V = [[] for _ in range(n)]
        self.pre = []
        self.post = []
    def used(self, g):
        return sum(vcost(x) for x in self.V[g]) + max(0, len([y for y in self.S[g] if y.kind != 'none']) - 1)
    def fits(self, g, x):
        u = self.used(g)
        if x.kind in ("dsr", "dsw"):
            return u <= 1 and not any(y.kind in ("dsr", "dsw") for y in self.V[g])
        return u + vcost(x) <= 2
    def put(self, g, text):
        x = Ins(text)
        if x.kind in ("salu", "wait", "bar", "nop", "ctl", "none", "smem"):
            self.S[g].append(x)
        elif x.kind in ("dsr", "dsw") and not any(y.kind in ("dsr", "dsw") for y in self.V[g]):
            self.V[g].insert(0, x)
        else:
            self.V[g].append(x)
        return g
    def place(self, g0, text, g1=None):
        x = Ins(text)
        n = len(self.m) if g1 is None else g1 + 1
        for g in range(g0, n):
            if x.kind in ("salu", "wait", "nop"):
                if not self.S[g]: return self.put(g, text)
            elif self.fits(g, x): return self.put(g, text)
        return None
    def lines(self):
        out = list(self.pre)
        for g, m in enumerate(self.m):
            out.append(m)
            out += [x.text for x in self.S[g]] + [x.text for x in self.V[g]]
        return out + list(self.post)
    def over(self):
        return sum(max(0, self.used(g) - 2) for g in range(len(self.m)))

def insert_lgkm(seq, minlat=3):
    for _pass in range(3):
        fifo = []
        nissued = 0
        done_upto = 0
        regid = {}
        hist = []
        changed = False
        def apply_wait(x):
            nonlocal done_upto
            v, l = wait_counts(x.text)
            if l is not None: done_upto = max(done_upto, nissued - l)
        def need(x):
            ids = [regid[r] for r in (x.rd + x.wr) if r in regid and regid[r] >= done_upto]
            if x.kind == "dsr": ids = [regid[r] for r in x.rd if r in regid and regid[r] >= done_upto]
            return max(ids) if ids else None
        def issue(x):
            nonlocal nissued
            if x.kind in ("dsr", "dsw"):
                for r in x.wr: regid[r] = nissued
                nissued += 1
        def add_wait(k, direct=None):
            nonlocal done_upto, changed
            changed = True
            best = None
            for (b, g, ni) in reversed(hist[-6:]):
                if ni <= k: break
                ws = [y for y in b.S[g] if y.kind == "wait"]
                if ws or not b.S[g] or b.used(g) < 2:
                    best = (b, g, ni); break
            if best is None:
                if hist and hist[-1][2] > k: best = hist[-1]
                else:
                    direct(); done_upto = k + 1; return
            b, g, ni = best
            cnt = ni - k - 1
            assert cnt >= 0
            cnt = min(cnt, 15)
            ws = [y for y in b.S[g] if y.kind == "wait"]
            if ws:
                v, l = wait_counts(ws[0].text)
                l = cnt if l is None else min(l, cnt)
                b.S[g][b.S[g].index(ws[0])] = Ins("s_waitcnt " + (f"vmcnt({v}) " if v is not None else "") + f"lgkmcnt({l})" + (" ;" + ws[0].text.split(";", 1)[1] if ";" in ws[0].text else ""))
            else:
                b.S[g].insert(0, Ins(f"s_waitcnt lgkmcnt({cnt})"))
            done_upto = max(done_upto, ni - cnt)
        for b in seq:
            for t in b.pre:
                x = Ins(t)
                if x.kind == "wait": apply_wait(x)
                issue(x)
            for g, m in enumerate(b.m):
                x = Ins(m)
                k = need(x)
                if k is not None:
                    def direct(b=b, g=g, k=k):
                        cnt = min(15, nissued - k - 1)
                        if g > 0: b.V[g-1].append(Ins(f"s_waitcnt lgkmcnt({cnt})"))
                        else: b.pre.append(f"s_waitcnt lgkmcnt({cnt})")
                    add_wait(k, direct)
                hist.append((b, g, nissued))
                for y in list(b.S[g]):
                    if y.kind == "wait": apply_wait(y)
                for y in list(b.V[g]):
                    if y.kind == "wait": apply_wait(y); continue
                    k = need(y)
                    if k is not None:
                        def direct(b=b, g=g, k=k, y=y):
                            b.V[g].insert(b.V[g].index(y), Ins(f"s_waitcnt lgkmcnt({min(15, nissued - k - 1)})"))
                        add_wait(k, direct)
                    issue(y)
            for t in b.post:
                x = Ins(t)
                if x.kind == "wait": apply_wait(x)
                issue(x)
        if not changed: break


def place_stream(b, ops, g0, g1=None, spread=None):
    n = len(b.m) if g1 is None else g1 + 1
    g = g0
    prev = None
    left = []
    placed = []
    for i, op in enumerate(ops):
        mg = 0
        if isinstance(op, tuple): op, mg = op
        g = max(g, mg)
        x = Ins(op)
        if prev is not None:
            pv = prev.kind not in ("salu", "wait", "nop")
            if pv and x.kind in ("salu", "wait", "nop", "dsr", "dsw"): g += 1
            elif not pv and ("x", "m0") in prev.wr and x.kind == "dma": g += 1
            elif prev.is_trans() and set(prev.wr) & set(x.rd): g += 1
        prev = x
        r = b.place(g, op, n - 1) if g < n else None
        if r is None:
            left = ops[i:]; break
        g = r; placed.append(r)
    return left, g

def fix_vm(seq):
    n = 0; last = {}
    def visit(text):
        nonlocal n
        if "@skip" in text: return text
        x = Ins(text)
        if x.kind in ("vld", "vst", "dma"):
            n += 1
            for t in re.findall(r"@i:(\w+)", text): last[t] = n
        m = re.search(r"@need:([\w,]+)", text)
        if m and x.kind == "wait":
            k = max(last[t] for t in m.group(1).split(","))
            c = min(n - k, int(re.search(r"vmcnt\((\d+)\)", text).group(1)))
            return re.sub(r"vmcnt\(\d+\)", f"vmcnt({c})", text)
        return text
    for b in seq:
        if isinstance(b, Body):
            b.pre[:] = [visit(t) for t in b.pre]
            for g in range(len(b.m)):
                b.S[g][:] = [Ins(visit(y.text)) for y in b.S[g]]
                b.V[g][:] = [Ins(visit(y.text)) for y in b.V[g]]
            b.post[:] = [visit(t) for t in b.post]
        else:
            b[:] = [visit(t) for t in b]
```

```python
import sys, copy, re
from mcommon import *
import p12, att, p4

def gen(stamps=False, opt={}):
    c = Ctx(stamps); c.opt = dict(opt); a = c.a
    import mcommon; mcommon.SLEEP = c.opt.get('sleep', 8)
    att.ROTM = c.opt.get('rot', 0)
    r = p12.gen_p12(c)
    a(f"s_and_b32 s{S_T}, s2, 0xf0\ns_cmp_eq_u32 s{S_T}, 0xf0\ns_cbranch_scc1 M_own\ns_bitcmp1_b32 s2, 4\ns_cbranch_scc1 M_conv\nM_own:")
    ST = lambda x, i, vt=28: stamp(x, i, 2, S_WS, vt=vt, st=S_ST) if stamps else None
    def STL(i):
        x = Asm(); ST(x, i); return [l.strip() for l in x.lines]
    def kdma(slot):
        d = att.dma_ops("K", slot)
        return [d["m0"][0]] + d["p"][:4] + [d["mid"], d["m0"][1]] + d["p"][4:] + d["end"]
    def groups(ops):
        grp = []; cur = []
        for e in ops:
            if not e.startswith("s_"): grp.append(cur + [e]); cur = []
            else: cur += [e] + (["s_nop 0"] if "m0," in e else [])
        grp[-1] += cur
        return grp
    KVT = f"v_cmp_gt_u32 vcc, 1, v{p12.V_PD}"
    q6 = copy.deepcopy(r["q6"])
    sx, v1, v2 = att.att_setup_ops(False)
    sx = [f"s_cmp_eq_u32 s{S_I}, 7", f"s_cselect_b32 s{p12.S_QO}, {INVALID}, s{p12.S_QO}"] + sx
    cut = sx.index(f"s_mov_b32 s{att.S_THR}, {f32bits(2.0**24)}")
    left, g = place_stream(q6, sx[:cut], 0); assert not left and g < 27, g
    left, g1 = place_stream(q6, p12.q_lds_addr() + v1[:8], 0); assert not left
    nq = p12.q_early(q6, g1, SC)
    left, g1 = place_stream(q6, v1[8:], g1)
    W0 = c.opt.get("w0", 0)
    skip = lambda l: [f"s_cmp_lg_u32 s{S_W}, 0", f"s_cbranch_scc1 {l}"] if W0 else []
    bar = ["s_barrier"] if W0 else []
    q6.post += [p12.KVPOLL]
    o = Asm(); o.nlabel = 9400
    ST(o, 2, 8)
    o("\n".join(p12.q_epilogue(True, True, SC, nq)))
    ST(o, 12, 8)
    o("\n".join(["s_waitcnt vmcnt(63) ; @need:kvp", KVT, "s_cbranch_vccnz M_kvspin", "M_kvok:"]))
    ST(o, 15, 8)
    o("\n".join(att.dma_lines("K", att.KSL[0])))
    o(f"v_add_u32 v28, s{att.S_M}, v{att.V_LV}")
    o("s_waitcnt lgkmcnt(0)\ns_barrier")
    for qt in range(2):
        for t in range(8): o(f"ds_read_b128 {ar(att.Qf(qt, t), 4)}, v28 offset:{qt*32768 + t*1024} ; @r:L4 @r:L5 @r:L6 @r:L7")
    o("\n".join(left + sx[cut:] + v2 + [f"s_add_u32 s{S_T}, s{S_FKV}, {FL_Q}", f"s_mov_b32 s{S_PUB}, {INVALID}"]))
    o("s_waitcnt vmcnt(63) ; @need:q\ns_barrier")
    o(att.flag_store(S_T))
    ST(o, 21, 8)
    o("\n".join(att.dma_lines("K", att.KSL[1])))
    o("\n".join(att.zero_o()))
    o("s_waitcnt vmcnt(63) lgkmcnt(0) ; @need:K0\ns_barrier")
    fix_vm([q6, o.lines])
    o.lines[:0] = q6.lines()
    a(o.text())
    c.op_hook = p4.op_hook
    ra = att.gen_att(c)
    c.ST(7, 28)
    n0 = len(a.lines)
    a(f"""
    s_and_b32 s{S_T}, s2, 0xd0
    s_cmp_eq_u32 s{S_T}, 0xd0
    s_cbranch_scc1 M_final
    """)
    mid = a.lines[n0:]
    to, rslow = p4.gen_reduce(c)
    a("M_fin:")
    if c.opt.get("xm"):
        a(f"s_mov_b32 s30, {2*c.opt['xm']}\nM_xm:")
        for m in range(128):
            a(f"v_mfma_f32_16x16x32_bf16 {ar(128 + 4*((m//2) % 32), 4)}, {ar(64 + 4*(m % 16), 4)}, {ar(64 + 4*((m*7 + 3) % 16), 4)}, {ar(128 + 4*((m//2) % 32), 4)}")
        a("s_sub_u32 s30, s30, 1\ns_cmp_lg_u32 s30, 0\ns_cbranch_scc1 M_xm")
    c.ST(9, 28)
    if stamps:
        a("s_waitcnt vmcnt(0)"); c.ST(10, 28)
    a("s_endpgm")
    fin = p4.gen_final(c)
    a("M_final:"); a(fin.text()); a("s_branch M_fin")
    a(rslow.text())
    q6c = copy.deepcopy(r["q6"])
    left, g = place_stream(q6c, p4.conv_setup(), 0); assert not left
    left, g = place_stream(q6c, p4.conv_dma(), g + 1); assert not left
    v = Asm(); v.nlabel = 9500
    CPOLL = f"buffer_load_dword v14, v15, s[{S_WS}:{S_WS+3}], s{S_FHD} offen sc1"
    sx, v1, v2 = att.att_setup_ops(True)
    sx += [f"s_lshl_b32 s{S_PUB}, s2, 2", f"s_add_u32 s{S_PUB}, s{S_PUB}, {WS_FLAG + FL_CONV}",
           f"s_lshl_b32 s31, s{att.S_QB}, 16", f"s_add_u32 s31, s31, s{att.S_HB}", f"s_add_u32 s31, s31, {WS_Q}",
           f"s_lshl_b32 s{S_T}, s{S_I}, 3", f"s_add_u32 s{S_T}, s{S_T}, {FL_Q}"]
    v2 += [f"v_lshrrev_b32 v15, 2, v{V_L}", f"v_mov_b32 v14, s{S_T}", "v_cmp_gt_u32 vcc, 64, v15", "s_nop 0", "v_cndmask_b32 v15, v14, v15, vcc"]
    def streams(b1, b2):
        b1.pre[1:1] = STL(19)
        b1.pre[0] = "s_waitcnt vmcnt(63) lgkmcnt(0) ; @need:cv"
        left, g = place_stream(b1, [e for tp in (1, 0) for ci in range(8) for e in p12.q_store(tp, ci, "")], 0); assert not left
        g8 = [i for i in range(len(b1.m)) if any("@i:q" in y.text for y in b1.V[i])][7]
        left, gs = place_stream(b1, sx, g + 1); assert not left
        left, g1 = place_stream(b1, v1, 0); assert not left
        left, gs = place_stream(b1, v2, max(gs, g1) + 1); assert not left
        gp = b1.place(max(gs + 4, len(b1.m) - 30), CPOLL); assert gp is not None
        zl, _ = place_stream(b1, att.zero_o(False), max(g1, g8) + 1)
        b1.post += STL(20) + skip("M_cok") + ["s_waitcnt vmcnt(0)", "v_cmp_gt_u32 vcc, 1, v14", "s_cbranch_vccnz M_cspin", "M_cok:"] + bar + STL(21)
        gb = len(b2.m) - 35
        left, g = place_stream(b2, ra["k"].load_q(31, 32768, SC) + kdma(att.KSL[0]), 0, gb - 2)
        b2.put(gb, "s_waitcnt lgkmcnt(0)"); b2.put(gb, "s_barrier")
        left, g = place_stream(b2, left + kdma(att.KSL[1]), gb + 1); assert not left
        left, _ = place_stream(b2, zl, 0, gb); assert not left
    cl, cb1, cb2 = p4.gen_conv(c, streams)
    cl = [l.strip() for l in cl]
    left, g = place_stream(q6c, [l for l in cl if not l.startswith("s_")], 12); assert not left
    nqc = p12.q_early(q6c, g)
    q6c.post += p4.conv_dload() + [l for l in cl if l.startswith("s_")]
    ST(v, 2)
    v("\n".join(p12.q_epilogue(False, False, "", nqc)))
    ST(v, 13)
    w = Asm(); w.nlabel = 9600
    ST(w, 14)
    w("s_waitcnt vmcnt(63) ; @need:K0,ql\ns_barrier")
    ST(w, 16)
    fix_vm([q6c, v.lines, cb1, cb2, w.lines])
    a("M_conv:"); a("\n".join(q6c.lines())); a(v.text()); a("\n".join(cb1.lines() + cb2.lines())); a(w.text()); a("s_branch K2_item")
    a("M_cspin:"); spin(a, [CPOLL], ["v_cmp_gt_u32 vcc, 1, v14"]); a("s_branch M_cok")
    a("M_kvspin:"); spin(a, [p12.KVPOLL], [KVT]); a("s_branch M_kvok")
    print("early q tiles", nq, nqc)
    a(ra["ool"]); a(r["ool"])
    a("M_end:\ns_endpgm")
    print("q6 overflow", q6.over(), q6c.over(), "conv", cb1.over(), cb2.over(), len(cb2.post))
    convp = q6c.lines() + v.lines + cb1.lines() + cb2.lines() + w.lines
    n = 0
    n += len(check_trace(r["traces"][0] + o.lines + ra["traces"][1] + mid + to, "A"))
    n += len(check_trace(r["traces"][1] + o.lines + ra["traces"][0] + mid + fin.lines, "B7"))
    n += len(check_trace(r["traces"][1] + convp + ra["traces"][2] + mid + to, "B0"))
    n += len(check_trace(r["traces"][1] + convp + ra["traces"][3] + mid + fin.lines, "B6"))
    n += len(check_trace(o.lines[-40:] + ra["traces"][4], "slow"))
    return a.text(), n

def write(path, stamps=False, opt={}):
    t, n = gen(stamps, opt)
    t = "\n".join(l.split(";")[0].strip() for l in t.split("\n") if l.split(";")[0].strip()) + "\n"
    hdr = "".join(l for l in open("concat_heads__ssm_conv_h3__compressed_kv_cla__prompt.s.ref") if l.startswith(";") and "aunch" not in l and "grid=" not in l)
    open(path, "w").write(file_text([(KN, t, 256, 256, 163840, 512, 256)], hdr))
    return n

if __name__ == "__main__":
    import json
    if len(sys.argv) > 1:
        for spec in sys.argv[1:]:
            name, _, js = spec.partition("=")
            o = json.loads(js) if js else {}
            write(f"work/{name}.s", o.pop("st", 1), o)
    else:
        write("mega_st.s", True)
        write("mega.s", False)
```
